```python
import torch

def _softmax(x, axis=-1):
    return torch.softmax(x, dim=axis)
def _gelu(x):
    return torch.nn.functional.gelu(x, approximate="tanh")
def _silu(x):
    return torch.nn.functional.silu(x)
def _sigmoid(x):
    return torch.sigmoid(x)
def _layernorm(x, axis=-1, eps=1e-5):
    m = x.mean(dim=axis, keepdim=True)
    v = x.var(dim=axis, keepdim=True, unbiased=False)
    return (x - m) / torch.sqrt(v + eps)
def _scatter_add(tgt, idx, src, axis=0):
    return tgt.clone().index_add_(axis, idx, src)
def _segment_sum(src, seg, n):
    out = torch.zeros((n,) + src.shape[1:], dtype=src.dtype)
    return out.index_add_(0, seg, src)
def _pad(x, pw):
    flat = tuple(v for pair in reversed(pw) for v in pair)
    return torch.nn.functional.pad(x, flat)

kernel_name = 'recurrent_scan__ssm_conv_h3__mixer_token_mlp__prompt'

def setup_inputs():

    _w = (lambda a: (lambda t: t.to(torch.bfloat16) if t.is_floating_point() else t)(torch.as_tensor(a)))
    def _A_setup():
        B, S, D = 1, 2048, 448
        ks = 4
        return {
            "q": _w((lambda *s: torch.randn(*s, dtype=torch.bfloat16) * 0.05)(B, S, D)),
            "k": _w((lambda *s: torch.randn(*s, dtype=torch.bfloat16) * 0.8)(B, S, D)),
            "v": _w((lambda *s: torch.randn(*s, dtype=torch.bfloat16) * 0.8)(B, S, D)),
            "shift_k": _w((lambda *s: torch.randn(*s, dtype=torch.bfloat16) * 0.8)(D, ks) * 0.5),
            "ssm_k": _w((lambda *s: torch.randn(*s, dtype=torch.bfloat16) * 0.8)(D, S) * (1.0 / S ** 0.5)),
            "ssm_D": _w((lambda *s: torch.randn(*s, dtype=torch.bfloat16) * 0.8)(D)),
        }
    _A_in = _A_setup()

    def _B_setup():
        B, S, D, F = 1, 2048, 448, 1792
        return {
            "x": _w((lambda *s: torch.randn(*s, dtype=torch.bfloat16) * 0.05)(B, S, D)),
            "w1": _w((lambda *s: torch.randn(*s, dtype=torch.bfloat16) * 0.8)(S, F) * (S ** -0.5)),
            "b1": _w((lambda *s: torch.randn(*s, dtype=torch.bfloat16) * 12.8)(F) * 0.02),
            "w2": _w((lambda *s: torch.randn(*s, dtype=torch.bfloat16) * 0.2)(F, S) * (F ** -0.5)),
            "b2": _w((lambda *s: torch.randn(*s, dtype=torch.bfloat16) * 1.6)(S) * 0.02),
        }
    _B_in = _B_setup()

    return {
        "A_q": _A_in["q"],
        "A_k": _A_in["k"],
        "A_v": _A_in["v"],
        "A_shift_k": _A_in["shift_k"],
        "A_ssm_k": _A_in["ssm_k"],
        "A_ssm_D": _A_in["ssm_D"],
        "B_x": _B_in["x"],
        "B_w1": _B_in["w1"],
        "B_b1": _B_in["b1"],
        "B_w2": _B_in["w2"],
        "B_b2": _B_in["b2"],
    }

def reference(A_q, A_k, A_v, A_shift_k, A_ssm_k, A_ssm_D, B_x, B_w1, B_b1, B_w2, B_b2):
    def _A_ref(q, k, v, shift_k, ssm_k, ssm_D):
        B, S, D = q.shape
        ks = shift_k.shape[-1]
        k_pad = _pad(k, ((0, 0), (ks - 1, 0), (0, 0)))
        k_shift = torch.zeros_like(k)
        for t in range(ks):
            k_shift = k_shift + k_pad[:, t:t + S, :] * shift_k[:, ks - 1 - t][None, None, :]
        kv = k_shift * v
        L = 2 * S
        kv_pad = _pad(kv, ((0, 0), (0, S), (0, 0)))
        kf_pad = _pad(ssm_k, ((0, 0), (0, S)))
        kv_f = (lambda x, axes=(-2,-1): torch.fft.rfft2(x.float(), dim=axes))(kv_pad[:, None, :, :], axes=(1, 2))
        kf_f = (lambda x, axes=(-2,-1): torch.fft.rfft2(x.float(), dim=axes))(kf_pad[:, None, :], axes=(1, 2))
        kf_f = (lambda x, *d: x.permute(*d))(kf_f, 1, 2, 0)
        y_f = kv_f * kf_f[None, :, :, :]
        y = (lambda x, s, axes=(-2,-1): torch.fft.irfft2(x, s=s, dim=axes).to(torch.bfloat16))(y_f, (1, L), axes=(1, 2))[:, 0, :S, :]
        y = y + kv * ssm_D[None, None, :]
        return q * y

    def _B_ref(x, w1, b1, w2, b2):
        B, S, D = x.shape
        h = _layernorm(x, axis=-1)
        u = torch.einsum("bsd,sf->bdf", h, w1) + b1
        u = _gelu(u)
        y = torch.einsum("bdf,fs->bds", u, w2) + b2
        return (lambda x, *d: x.permute(*d))(y, 0, 2, 1)

    x = A_q
    xn = _layernorm(x, axis=-1)
    s = _A_ref(xn, A_k, A_v, A_shift_k, A_ssm_k, A_ssm_D)
    g = _silu(_B_ref(xn, B_w1, B_b1, B_w2, B_b2))
    return x + s * g
```

```python
import sys, math, struct

S, D, F = 2048, 448, 1792
WS_HF, WS_KVT, WS_ST, WS_UF, WS_ZT = 0x0, 0x200000, 0x400000, 0x500000, 0x800000
SZ_SD = S * D * 2
SZ_UF = F * D * 2
OOB = 0x80000000

def f2u(x): return struct.unpack("<I", struct.pack("<f", x))[0]
def hx(x): return f"0x{x & 0xffffffff:x}"

class A:
    def __init__(self): self.l = []
    def __call__(self, s):
        for ln in s.strip("\n").split("\n"):
            self.l.append(ln if ln.rstrip().endswith(":") else "  " + ln.strip())
    def text(self): return "\n".join(self.l) + "\n"

def srd(a, d, lo, hi, nbytes, add=0):
    if add:
        a(f"s_add_u32 s{d}, s{lo}, {hx(add)}\ns_addc_u32 s{d+1}, s{hi}, 0")
    else:
        a(f"s_mov_b32 s{d}, s{lo}\ns_mov_b32 s{d+1}, s{hi}")
    a(f"s_mov_b32 s{d+2}, {hx(nbytes)}\ns_mov_b32 s{d+3}, 0x20000")

def vr(b, n): return f"v[{b}:{b+n-1}]" if n > 1 else f"v{b}"

def allreduce32(a, v, t, t2):
    for m in ("quad_perm:[1,0,3,2]", "quad_perm:[2,3,0,1]", "row_half_mirror", "row_mirror"):
        a(f"s_nop 1\nv_add_f32_dpp v{v}, v{v}, v{v} {m} row_mask:0xf bank_mask:0xf")
    a(f"v_mov_b32 v{t}, v{v}\ns_nop 1\nv_permlane16_swap_b32 v{t}, v{v}\ns_nop 1\nv_add_f32 v{v}, v{v}, v{t}")

def gen_k1(cfg):
    a = A()
    NLN, NKV = 256, 224
    a(f"""
s_cmp_ge_u32 s2, {NLN+NKV}
s_cbranch_scc1 K1_END
s_load_dwordx4 s[4:7], s[0:1], 0
s_load_dwordx4 s[8:11], s[0:1], 16
s_load_dwordx2 s[12:13], s[0:1], 104
s_mov_b32 s30, 0xffff0000
s_cmp_ge_u32 s2, {NLN}
s_cbranch_scc1 K1_KV
""")
    LP = 960
    a(f"""
v_lshrrev_b32 v1, 5, v0
v_and_b32 v2, 31, v0
s_lshl_b32 s3, s2, 3
v_add_u32 v3, s3, v1
v_mul_u32_u24 v4, 896, v3
v_lshl_add_u32 v4, v2, 4, v4
v_cmp_gt_u32 vcc, 28, v2
v_mov_b32 v5, {hx(OOB)}
v_readfirstlane_b32 s31, v0
v_cndmask_b32 v4, v5, v4, vcc
v_cndmask_b32 v6, 0, 1.0, vcc
s_waitcnt lgkmcnt(0)
""")
    srd(a, 16, 4, 5, SZ_SD)
    a(f"""
buffer_load_dwordx4 v[8:11], v4, s[16:19], 0 offen
buffer_load_dwordx4 v[12:15], v4, s[16:19], 0 offen offset:448
""")
    srd(a, 20, 12, 13, SZ_SD, WS_HF)
    srd(a, 24, 12, 13, S * 8, WS_ST)
    a(f"""
v_mul_u32_u24 v7, {LP}, v1
v_lshl_add_u32 v7, v2, 4, v7
v_and_b32 v40, 63, v0
v_lshrrev_b32 v41, 2, v40
v_and_b32 v41, 3, v41
v_mul_u32_u24 v41, {LP}, v41
v_lshrrev_b32 v42, 4, v0
v_lshlrev_b32 v42, 5, v42
v_and_b32 v43, 3, v0
v_lshlrev_b32 v43, 3, v43
v_add3_u32 v41, v41, v42, v43
s_mul_i32 s14, s2, 7168
v_lshlrev_b32 v44, 4, v0
v_lshlrev_b32 v45, 3, v3
s_waitcnt vmcnt(0)
""")
    for i in range(8):
        a(f"v_lshlrev_b32 v{16+2*i}, 16, v{8+i}\nv_and_b32 v{17+2*i}, s30, v{8+i}")
    a("v_pk_add_f32 v[32:33], v[16:17], v[18:19]")
    a("v_pk_add_f32 v[34:35], v[20:21], v[22:23]")
    a("v_pk_add_f32 v[36:37], v[24:25], v[26:27]")
    a("v_pk_add_f32 v[38:39], v[28:29], v[30:31]")
    a("v_pk_add_f32 v[32:33], v[32:33], v[34:35]")
    a("v_pk_add_f32 v[36:37], v[36:37], v[38:39]")
    a("v_pk_add_f32 v[32:33], v[32:33], v[36:37]")
    a("v_add_f32 v32, v32, v33")
    allreduce32(a, 32, 33, 34)
    a(f"v_mul_f32 v32, {hx(f2u(1.0/D))}, v32")
    a("s_nop 0")
    for i in range(8):
        a(f"v_pk_add_f32 v[{16+2*i}:{17+2*i}], v[{16+2*i}:{17+2*i}], v[32:33] op_sel_hi:[1,0] neg_lo:[0,1] neg_hi:[0,1]")
    a("v_pk_mul_f32 v[34:35], v[16:17], v[16:17]")
    a("v_pk_mul_f32 v[36:37], v[18:19], v[18:19]")
    for i in range(2, 8):
        r = 34 + 2 * (i % 2)
        a(f"v_pk_fma_f32 v[{r}:{r+1}], v[{16+2*i}:{17+2*i}], v[{16+2*i}:{17+2*i}], v[{r}:{r+1}]")
    a("v_pk_add_f32 v[34:35], v[34:35], v[36:37]")
    a("v_add_f32 v34, v34, v35")
    a("v_mul_f32 v34, v34, v6")
    allreduce32(a, 34, 35, 36)
    eps = hx(f2u(1e-5))
    a(f"""
v_mul_f32 v34, {hx(f2u(1.0/D))}, v34
v_add_f32 v35, {eps}, v34
v_rsq_f32 v33, v35
s_nop 0
v_mul_f32 v36, v33, v33
v_fmaak_f32 v36, v36, v34, {eps}
v_rsq_f32 v36, v36
s_nop 0
v_mul_f32 v36, v36, v33
s_nop 0
""")
    for i in range(8):
        a(f"v_pk_mul_f32 v[{16+2*i}:{17+2*i}], v[{16+2*i}:{17+2*i}], v[36:37] op_sel_hi:[1,0]")
    for i in range(8):
        a(f"v_cvt_pk_bf16_f32 v{8+i}, v{16+2*i}, v{17+2*i}")
    a(f"""
s_and_saveexec_b64 s[28:29], vcc
ds_write_b128 v7, v[8:11]
ds_write_b128 v7, v[12:15] offset:448
v_cmp_eq_u32 vcc, 0, v2
s_and_b64 exec, exec, vcc
buffer_store_dwordx2 v[32:33], v45, s[24:27], 0 offen
s_mov_b64 exec, s[28:29]
s_waitcnt lgkmcnt(0)
s_barrier
ds_read_b64_tr_b16 v[8:9], v41
ds_read_b64_tr_b16 v[10:11], v41 offset:{4*LP}
s_cmp_ge_u32 s31, 192
s_cbranch_scc1 K1_LN_LAST
ds_read_b64_tr_b16 v[12:13], v41 offset:512
ds_read_b64_tr_b16 v[14:15], v41 offset:{4*LP+512}
s_waitcnt lgkmcnt(0)
s_add_u32 s15, s14, 4096
buffer_store_dwordx4 v[12:15], v44, s[20:23], s15 offen
K1_LN_LAST:
s_waitcnt lgkmcnt(0)
buffer_store_dwordx4 v[8:11], v44, s[20:23], s14 offen
s_endpgm
""")
    a(f"""
K1_KV:
s_sub_u32 s3, s2, {NLN}
s_mul_i32 s14, s3, 9363
s_lshr_b32 s14, s14, 16
s_mul_i32 s15, s14, 7
s_sub_u32 s15, s3, s15
v_lshrrev_b32 v1, 5, v0
v_and_b32 v2, 31, v0
s_lshl_b32 s14, s14, 3
v_add_u32 v3, s14, v1
s_lshl_b32 s15, s15, 5
v_add_u32 v2, s15, v2
v_mul_u32_u24 v4, 7168, v3
v_lshl_add_u32 v4, v2, 2, v4
v_add_u32 v5, 3584, v4
v_subrev_u32 v6, 2688, v4
v_mov_b32 v7, {hx(OOB)}
v_cmp_eq_u32 vcc, 0, v3
v_lshlrev_b32 v48, 4, v2
s_nop 0
v_cndmask_b32 v6, v6, v7, vcc
s_waitcnt lgkmcnt(0)
""")
    srd(a, 16, 6, 7, SZ_SD)
    srd(a, 20, 8, 9, SZ_SD)
    srd(a, 24, 10, 11, D * 8)
    a("buffer_load_dwordx4 v[44:47], v48, s[24:27], 0 offen")
    for j in range(3):
        a(f"buffer_load_dword v{8+j}, v6, s[16:19], 0 offen offset:{896*j}")
    for j in range(8):
        a(f"buffer_load_dword v{11+j}, v{4 + j//4}, s[16:19], 0 offen offset:{896*(j%4)}")
    for j in range(8):
        a(f"buffer_load_dword v{20+j}, v{4 + j//4}, s[20:23], 0 offen offset:{896*(j%4)}")
    srd(a, 32, 12, 13, SZ_SD, WS_KVT)
    a(f"""
v_lshlrev_b32 v49, 13, v2
v_lshl_add_u32 v49, v3, 4, v49
v_add_u32 v58, 4096, v49
s_waitcnt vmcnt(19)
""")
    a("""
v_lshlrev_b32 v50, 16, v44
v_lshlrev_b32 v51, 16, v46
v_and_b32 v52, s30, v44
v_and_b32 v53, s30, v46
v_lshlrev_b32 v54, 16, v45
v_lshlrev_b32 v55, 16, v47
v_and_b32 v56, s30, v45
v_and_b32 v57, s30, v47
s_waitcnt vmcnt(8)
""")
    for r in range(11):
        a(f"v_lshlrev_b32 v{64+2*r}, 16, v{8+r}\nv_and_b32 v{65+2*r}, s30, v{8+r}")
    for j in range(8):
        o = 96 + 2 * j
        a(f"v_pk_mul_f32 v[{o}:{o+1}], v[{64+2*(j+3)}:{65+2*(j+3)}], v[50:51]")
    for t in range(1, 4):
        for j in range(8):
            o = 96 + 2 * j; r = j + 3 - t
            a(f"v_pk_fma_f32 v[{o}:{o+1}], v[{64+2*r}:{65+2*r}], v[{50+2*t}:{51+2*t}], v[{o}:{o+1}]")
    a("s_waitcnt vmcnt(0)")
    for j in range(8):
        a(f"v_lshlrev_b32 v{64+2*j}, 16, v{20+j}\nv_and_b32 v{65+2*j}, s30, v{20+j}")
    for j in range(8):
        o = 96 + 2 * j
        a(f"v_pk_mul_f32 v[{o}:{o+1}], v[{o}:{o+1}], v[{64+2*j}:{65+2*j}]")
    for c in range(2):
        for m in range(4):
            a(f"v_cvt_pk_bf16_f32 v{8+4*c+m}, v{96+2*(7-2*m)+c}, v{96+2*(6-2*m)+c}")
    a("""
buffer_store_dwordx4 v[8:11], v49, s[32:35], 0 offen
buffer_store_dwordx4 v[12:15], v58, s[32:35], 0 offen
K1_END:
""")
    return a.text()

ACC, DIR, TRF = 64, 128, 192
def gemm_main(a, tag, NST, P, pitch, tr_is_A, sW, sF):
    incW, incF = 16 * pitch, 2 * 7168
    def loads(slot):
        a(f"s_add_u32 m0, s42, {slot*2048}" if slot else "s_mov_b32 m0, s42")
        a(f"buffer_load_dwordx4 v[{DIR+8*slot}:{DIR+8*slot+3}], v12, s[{sF}:{sF+3}], s41 offen")
        a(f"buffer_load_dwordx4 v10, s[{sW}:{sW+3}], s40 offen lds")
        a(f"buffer_load_dwordx4 v[{DIR+8*slot+4}:{DIR+8*slot+7}], v12, s[{sF}:{sF+3}], s41 offen offset:512")
        a(f"buffer_load_dwordx4 v11, s[{sW}:{sW+3}], s40 offen offset:1024 lds")
        a("s_add_u32 s40, s40, s43\ns_add_u32 s41, s41, s44")
    def trread(h, slot):
        a(f"ds_read_b64_tr_b16 v[{TRF+4*h}:{TRF+4*h+1}], v{13+h} offset:{slot*2048}")
        a(f"ds_read_b64_tr_b16 v[{TRF+4*h+2}:{TRF+4*h+3}], v{13+h} offset:{slot*2048+512}")
    def mfma(h, b, slot):
        q = ACC + 16 * (2 * h + b)
        t = vr(TRF + 4 * h, 4); d = vr(DIR + 8 * slot + 4 * b, 4)
        x, y = (t, d) if tr_is_A else (d, t)
        a(f"v_mfma_f32_32x32x16_bf16 v[{q}:{q+15}], {x}, {y}, v[{q}:{q+15}]")
    a(f"s_mov_b32 s43, {incW}\ns_mov_b32 s44, {incF}")
    for s in range(P): loads(s)
    for i in range(0, 64, 2):
        a(f"v_mov_b64 v[{ACC+i}:{ACC+i+1}], 0")
    a(f"s_mov_b32 s45, {NST//P}")
    a(f"s_waitcnt vmcnt({4*(P-1)})")
    trread(0, 0); trread(1, 0)
    a(f"{tag}_LOOP:")
    a(f"""
s_cmp_eq_u32 s45, 1
s_cselect_b32 s40, s{sW+2}, s40
s_cselect_b32 s41, s{sF+2}, s41
s_cselect_b32 s43, 0, s43
s_cselect_b32 s44, 0, s44
""")
    for s in range(P):
        n = (s + 1) % P
        a("s_waitcnt lgkmcnt(2)")
        mfma(0, 0, s); mfma(0, 1, s)
        a(f"s_waitcnt vmcnt({4*(P-2)})")
        trread(0, n)
        a("s_waitcnt lgkmcnt(2)")
        mfma(1, 0, s); mfma(1, 1, s)
        trread(1, n)
        loads(s)
    a(f"""
s_sub_u32 s45, s45, 1
s_cmp_lg_u32 s45, 0
s_cbranch_scc1 {tag}_LOOP
s_waitcnt vmcnt(0) lgkmcnt(0)
""")

def gemm_addr(a, pitch, RING):
    a(f"""
v_and_b32 v1, 63, v0
v_lshrrev_b32 v2, 3, v1
v_mul_u32_u24 v10, {pitch}, v2
v_and_b32 v3, 7, v1
v_lshrrev_b32 v4, 2, v1
v_and_b32 v4, 4, v4
v_xor_b32 v3, v3, v4
v_lshl_add_u32 v10, v3, 4, v10
v_add_u32 v11, {8*pitch-1024}, v10
v_lshrrev_b32 v5, 5, v1
v_mul_u32_u24 v12, 7168, v5
v_and_b32 v6, 31, v1
v_lshl_add_u32 v12, v6, 4, v12
s_mul_i32 s42, s14, {RING}
v_bfe_u32 v7, v1, 2, 2
v_lshl_add_u32 v8, v5, 3, v7
v_lshlrev_b32 v13, 7, v8
v_bfe_u32 v8, v1, 4, 1
v_and_b32 v7, 2, v7
v_xor_b32 v8, v8, v7
v_lshl_add_u32 v13, v8, 5, v13
v_and_b32 v7, 3, v1
v_lshl_add_u32 v13, v7, 3, v13
v_add_u32 v13, s42, v13
v_xor_b32 v14, 64, v13
""")

def gemm_reduce(a, RING):
    a(f"""
v_lshlrev_b32 v15, 4, v1
v_add_u32 v2, s42, v15
s_nop 7
""")
    for q in range(4):
        for r in range(4):
            a(f"ds_write_b128 v2, v[{ACC+16*q+4*r}:{ACC+16*q+4*r+3}] offset:{q*4096+r*1024}")
    a(f"""
s_lshl_b32 s46, s14, 12
v_add_u32 v15, s46, v15
s_waitcnt lgkmcnt(0)
s_barrier
""")
    for w in range(4):
        for r in range(4):
            a(f"ds_read_b128 v[{ACC+16*w+4*r}:{ACC+16*w+4*r+3}], v15 offset:{w*RING+r*1024}")
    for r in range(4):
        a(f"s_waitcnt lgkmcnt({11-r})")
        for h in range(2):
            o = 4 * r + 2 * h
            a(f"v_pk_add_f32 v[{16+o}:{17+o}], v[{ACC+o}:{ACC+o+1}], v[{ACC+16+o}:{ACC+17+o}]")
    for w in (2, 3):
        for r in range(4):
            a(f"s_waitcnt lgkmcnt({15-4*w-r})")
            for h in range(2):
                o = 4 * r + 2 * h
                a(f"v_pk_add_f32 v[{16+o}:{17+o}], v[{16+o}:{17+o}], v[{ACC+16*w+o}:{ACC+16*w+o+1}]")

def gen_k2(cfg):
    a = A()
    P, NST, RING = 8, 32, 16384
    CONV0 = 4 * RING
    HC = 4160
    CH = 4 * HC + 4608
    a(f"""
s_cmp_ge_u32 s2, 224
s_cbranch_scc1 K2_END
s_load_dwordx4 s[4:7], s[0:1], 56
s_load_dwordx2 s[12:13], s[0:1], 104
s_load_dwordx4 s[8:11], s[0:1], 32
v_lshrrev_b32 v1, 6, v0
s_mov_b32 s30, 0xffff0000
v_readfirstlane_b32 s14, v1
s_cmp_ge_u32 s14, 4
s_cbranch_scc1 K2_CONV
s_setprio 2
s_and_b32 s15, s2, 7
s_lshr_b32 s3, s2, 3
s_and_b32 s16, s15, 1
s_sub_u32 s16, 25, s16
s_cmp_ge_u32 s3, s16
s_cbranch_scc1 K2_END
s_mul_i32 s15, s15, 49
s_add_u32 s15, s15, 1
s_lshr_b32 s15, s15, 1
s_add_u32 s15, s15, s3
s_mul_i32 s16, s15, 9363
s_lshr_b32 s16, s16, 16
s_mul_i32 s17, s16, 7
s_sub_u32 s17, s15, s17
""")
    gemm_addr(a, 3584, RING)
    a(f"""
s_mul_i32 s40, s14, {512*3584}
s_lshl_b32 s18, s16, 7
s_add_u32 s40, s40, s18
s_mul_i32 s41, s14, {64*7168}
s_lshl_b32 s19, s17, 10
s_add_u32 s41, s41, s19
s_lshr_b32 s47, s14, 1
s_and_b32 s48, s14, 1
s_lshl_b32 s49, s47, 6
s_add_u32 s49, s49, s18
v_lshlrev_b32 v9, 3, v5
s_waitcnt lgkmcnt(0)
""")
    srd(a, 20, 4, 5, S * F * 2)
    srd(a, 24, 12, 13, SZ_SD, WS_HF)
    srd(a, 28 + 4, 6, 7, F * 2)
    for rg in range(4):
        a(f"buffer_load_dwordx2 v[{32+2*rg}:{33+2*rg}], v9, s[32:35], s49 offen offset:{16*rg}")
    gemm_main(a, "K2", NST, P, 3584, True, 20, 24)
    gemm_reduce(a, RING)
    srd(a, 36, 12, 13, SZ_UF, WS_UF)
    c = math.sqrt(2 / math.pi); l2e = math.log2(math.e)
    k0 = -2 * c * l2e; k1 = k0 * 0.044715
    a(f"""
s_mov_b32 s50, {hx(f2u(k1))}
v_mov_b32 v40, {hx(f2u(k0))}
s_lshl_b32 s51, s16, 3
s_lshl_b32 s52, s47, 2
s_add_u32 s51, s51, s52
s_mul_i32 s51, s51, 7168
s_add_u32 s51, s51, s19
s_lshl_b32 s52, s48, 9
s_add_u32 s51, s51, s52
s_add_u32 s52, s51, {2*7168}
""")
    for rg in range(4):
        b = 32 + 2 * rg
        a(f"v_lshlrev_b32 v44, 16, v{b}\nv_and_b32 v45, s30, v{b}\nv_lshlrev_b32 v46, 16, v{b+1}\nv_and_b32 v47, s30, v{b+1}")
        u = 16 + 4 * rg
        a(f"v_pk_add_f32 v[{u}:{u+1}], v[{u}:{u+1}], v[44:45]\nv_pk_add_f32 v[{u+2}:{u+3}], v[{u+2}:{u+3}], v[46:47]")
        a(f"v_pk_mul_f32 v[44:45], v[{u}:{u+1}], v[{u}:{u+1}]\nv_pk_mul_f32 v[46:47], v[{u+2}:{u+3}], v[{u+2}:{u+3}]")
        for r in range(4): a(f"v_fma_f32 v{44+r}, v{44+r}, s50, v40")
        a(f"v_pk_mul_f32 v[44:45], v[44:45], v[{u}:{u+1}]\nv_pk_mul_f32 v[46:47], v[46:47], v[{u+2}:{u+3}]")
        for r in range(4): a(f"v_exp_f32 v{44+r}, v{44+r}")
        for r in range(4): a(f"v_add_f32 v{44+r}, 1.0, v{44+r}")
        for r in range(4): a(f"v_rcp_f32 v{44+r}, v{44+r}")
        a("s_nop 0")
        a(f"v_pk_mul_f32 v[44:45], v[44:45], v[{u}:{u+1}]\nv_pk_mul_f32 v[46:47], v[46:47], v[{u+2}:{u+3}]")
        a(f"v_cvt_pk_bf16_f32 v{48+2*rg}, v44, v45\nv_cvt_pk_bf16_f32 v{49+2*rg}, v46, v47")
        if rg & 1:
            x = 48 + 2 * (rg - 1)
            a(f"s_nop 1\nv_permlane32_swap_b32 v{x}, v{x+2}\nv_permlane32_swap_b32 v{x+1}, v{x+3}")
            a(f"buffer_store_dwordx4 v[{x}:{x+3}], v12, s[36:39], s{51 + rg//2} offen")
    a("s_endpgm")
    CA, CB, CACC = 96, 128, 64
    a(f"""
K2_CONV:
s_sub_u32 s14, s14, 4
s_lshl_b32 s15, s2, 1
s_add_u32 s15, s15, s14
s_mul_i32 s42, s14, {CH}
s_add_u32 s42, s42, {CONV0}
s_lshl_b32 s16, s15, 12
v_and_b32 v1, 63, v0
v_lshlrev_b32 v2, 4, v1
v_subrev_u32 v3, 8, v2
v_mov_b32 v4, {hx(OOB)}
v_cmp_eq_u32 vcc, 0, v1
s_lshl_b32 s17, s15, 1
v_mov_b32 v5, s17
v_cndmask_b32 v4, v3, v4, vcc
v_add_u32 v3, 1016, v2
s_waitcnt lgkmcnt(0)
s_add_u32 s20, s8, s16
s_addc_u32 s21, s9, 0
s_mov_b32 s22, 4096
s_mov_b32 s23, 0x20000
""")
    srd(a, 24, 12, 13, SZ_SD, WS_KVT)
    srd(a, 32, 10, 11, D * 2)
    for p in range(4):
        b = 8 + 6 * p
        a(f"buffer_load_dwordx2 v[{b}:{b+1}], v{4 if p == 0 else 3}, s[20:23], 0 offen offset:{1024*max(p-1,0)}")
        a(f"buffer_load_dwordx4 v[{b+2}:{b+5}], v2, s[20:23], 0 offen offset:{1024*p}")
    a(f"s_add_u32 m0, s42, {4*HC+512}")
    a("buffer_load_ushort v6, v5, s[32:35], 0 offen")
    for p in range(4):
        a(f"buffer_load_dwordx4 v2, s[24:27], s16 offen offset:{1024*p} lds")
    srd(a, 36, 12, 13, SZ_SD, WS_ZT)
    a(f"""
v_mov_b64 v[40:41], 0
v_mov_b64 v[42:43], 0
v_add_u32 v7, s42, v2
v_lshrrev_b32 v32, 2, v1
v_mul_u32_u24 v32, {HC}, v32
v_and_b32 v33, 3, v1
v_lshl_add_u32 v32, v33, 4, v32
v_add_u32 v32, s42, v32
v_cmp_gt_u32 vcc, 32, v1
s_and_saveexec_b64 s[28:29], vcc
ds_write_b128 v7, v[40:43] offset:{4*HC}
v_cmp_gt_u32 vcc, 16, v1
s_and_b64 exec, exec, vcc
ds_write_b128 v32, v[40:43]
s_mov_b64 exec, s[28:29]
""")
    a(f"""
v_and_b32 v33, 15, v1
v_lshrrev_b32 v34, 4, v1
v_sub_u32 v35, 3, v33
v_and_b32 v35, 3, v35
v_add3_u32 v36, v33, v35, 9
v_lshlrev_b32 v37, 3, v34
v_sub_u32 v36, v36, v37
v_mul_u32_u24 v35, {HC}, v35
v_lshl_add_u32 v36, v36, 1, v35
v_add3_u32 v36, v36, s42, 64
v_lshlrev_b32 v37, 5, v33
v_lshl_add_u32 v37, v34, 4, v37
v_add_u32 v37, s42, v37
v_add_u32 v37, {4*HC+512-32}, v37
v_lshlrev_b32 v38, 3, v34
v_lshl_add_u32 v38, v33, 5, v38
""")
    for p in range(4):
        b = 8 + 6 * p
        a(f"s_waitcnt vmcnt({5 + 2*(3-p)})")
        o = 64 + 1024 * p
        a(f"ds_write_b128 v7, v[{b+2}:{b+5}] offset:{o}")
        for k in range(4): a(f"v_alignbit_b32 v{44+k}, v{b+2+k}, v{b+1+k}, 16")
        a(f"ds_write_b128 v7, v[44:47] offset:{HC+o}")
        for k in range(4): a(f"v_mov_b32 v{48+k}, v{b+1+k}")
        a(f"ds_write_b128 v7, v[48:51] offset:{2*HC+o}")
        for k in range(4): a(f"v_alignbit_b32 v{52+k}, v{b+1+k}, v{b+k}, 16")
        a(f"ds_write_b128 v7, v[52:55] offset:{3*HC+o}")
        a("s_nop 0")
    a(f"""
s_waitcnt vmcnt(0)
v_lshrrev_b32 v44, 3, v33
v_add_u32 v44, 2, v44
v_cmp_eq_u32 vcc, v44, v34
v_and_b32 v45, 1, v33
v_lshlrev_b32 v46, 16, v6
v_cndmask_b32 v6, 0, v6, vcc
v_cndmask_b32 v46, 0, v46, vcc
v_cmp_eq_u32 vcc, 0, v45
v_bfe_u32 v47, v33, 1, 2
s_nop 0
v_cndmask_b32 v6, v6, v46, vcc
""")
    for k in range(4):
        a(f"v_cmp_eq_u32 vcc, {3-k}, v47\ns_nop 1\nv_cndmask_b32 v{56+k}, 0, v6, vcc")
    a("s_waitcnt lgkmcnt(0)")
    def rdA(t):
        a(f"ds_read_b64 v[{CA+4*t}:{CA+4*t+1}], v36 offset:{512*t}")
        a(f"ds_read_b64 v[{CA+4*t+2}:{CA+4*t+3}], v36 offset:{512*t+8}")
    def rdB(u):
        a(f"ds_read_b128 v[{CB+4*u}:{CB+4*u+3}], v37 offset:{512*u}")
    def mf(acc, x, y, c=None):
        a(f"v_mfma_f32_16x16x32_bf16 v[{CACC+4*acc}:{CACC+4*acc+3}], {x}, {y}, {c if c is not None else vr(CACC+4*acc,4)}")
    for u in range(8): rdB(u)
    for u in range(8):
        a(f"s_waitcnt lgkmcnt({7-u})")
        mf(u, "v[56:59]", vr(CB + 4 * u, 4), "0")
    for t in range(7, -1, -1): rdA(t)
    a("v_add_u32 v36, 64, v36\nv_subrev_u32 v37, 64, v37\ns_mov_b32 s45, 8\ns_waitcnt lgkmcnt(0)")
    a("K2_CLOOP:")
    def body(emit):
        q = body.q
        def need(tag):
            idx = max(i for i, x in enumerate(q) if x == tag) if tag in q else -1
            if idx < 0: return
            n = len(q) - 1 - idx
            if emit: a(f"s_waitcnt lgkmcnt({min(n,14)})")
            del q[:idx + 1]
        for t in range(7, -1, -1):
            need(f"A{t}")
            for u in range(0, 8 - t):
                need(f"B{u}")
                if emit: mf(t + u, vr(CA + 4 * t, 4), vr(CB + 4 * u, 4))
                if t == 0:
                    if emit: rdB(u)
                    q.append(f"B{u}")
            if emit: rdA(t)
            q.append(f"A{t}"); q.append(f"A{t}")
    body.q = []
    body(False)
    body(True)
    a(f"""
v_add_u32 v36, 64, v36
v_subrev_u32 v37, 64, v37
s_sub_u32 s45, s45, 1
s_cmp_lg_u32 s45, 0
s_cbranch_scc1 K2_CLOOP
s_nop 7
""")
    for nb in range(8):
        q = CACC + 4 * nb
        a(f"v_cvt_pk_bf16_f32 v{q}, v{q}, v{q+1}\nv_cvt_pk_bf16_f32 v{q+1}, v{q+2}, v{q+3}")
        a(f"buffer_store_dwordx2 v[{q}:{q+1}], v38, s[36:39], s16 offen offset:{512*nb}")
    a("K2_END:")
    lds = CONV0 + 2 * CH
    return a.text(), lds

def gen_k3(cfg):
    a = A()
    P, NST, RING = 7, 28, 16384
    ZL = 4 * RING
    a(f"""
s_cmp_ge_u32 s2, 224
s_cbranch_scc1 K3_END
s_load_dwordx4 s[4:7], s[0:1], 72
s_load_dwordx2 s[12:13], s[0:1], 104
s_load_dwordx2 s[8:9], s[0:1], 0
s_load_dwordx2 s[10:11], s[0:1], 88
v_lshrrev_b32 v1, 6, v0
s_mov_b32 s30, 0xffff0000
v_readfirstlane_b32 s14, v1
s_and_b32 s15, s2, 7
s_lshr_b32 s3, s2, 3
s_mul_i32 s16, s3, 9363
s_lshr_b32 s16, s16, 16
s_mul_i32 s17, s16, 7
s_sub_u32 s17, s3, s17
s_lshl_b32 s15, s15, 2
s_add_u32 s16, s16, s15
""")
    gemm_addr(a, 4096, RING)
    a(f"""
s_mul_i32 s40, s14, {448*4096}
s_lshl_b32 s18, s16, 7
s_add_u32 s40, s40, s18
s_mul_i32 s41, s14, {56*7168}
s_lshl_b32 s19, s17, 10
s_add_u32 s41, s41, s19
s_lshr_b32 s47, s14, 1
s_and_b32 s48, s14, 1
""")
    a(f"""
s_lshl_b32 s49, s16, 6
s_lshl_b32 s50, s47, 5
s_add_u32 s49, s49, s50
v_add_u32 v40, s49, v6
v_mul_u32_u24 v41, 896, v40
v_lshl_add_u32 v41, v5, 3, v41
s_lshl_b32 s51, s17, 7
s_lshl_b32 s50, s48, 6
s_add_u32 s51, s51, s50
v_lshlrev_b32 v42, 3, v40
v_lshlrev_b32 v43, 1, v40
s_lshl_b32 s52, s17, 6
s_lshl_b32 s53, s14, 4
s_add_u32 s52, s52, s53
s_lshl_b32 s52, s52, 12
s_add_u32 s52, s52, s18
s_lshl_b32 s53, s14, 11
s_add_u32 m0, s53, {ZL}
s_waitcnt lgkmcnt(0)
""")
    srd(a, 20, 4, 5, S * F * 2)
    srd(a, 24, 12, 13, SZ_UF, WS_UF)
    srd(a, 32, 8, 9, SZ_SD)
    srd(a, 36, 12, 13, SZ_SD, WS_ZT)
    srd(a, 56, 12, 13, S * 8, WS_ST)
    srd(a, 60, 6, 7, S * 2)
    a("buffer_load_dwordx4 v10, s[36:39], s52 offen lds")
    a("buffer_load_dwordx4 v11, s[36:39], s52 offen offset:1024 lds")
    for rg in range(4):
        a(f"buffer_load_dwordx2 v[{32+2*rg}:{33+2*rg}], v41, s[32:35], s51 offen offset:{16*rg}")
    a("buffer_load_dwordx2 v[44:45], v42, s[56:59], 0 offen")
    a("buffer_load_ushort v46, v43, s[60:63], 0 offen")
    gemm_main(a, "K3", NST, P, 4096, False, 20, 24)
    gemm_reduce(a, RING)
    srd(a, 36, 10, 11, SZ_SD)
    a(f"""
v_subrev_u32 v47, s42, v13
v_lshlrev_b32 v48, 9, v5
v_sub_u32 v47, v47, v48
s_lshl_b32 s53, s47, 6
v_xor_b32 v47, s53, v47
s_lshl_b32 s53, s48, 12
s_add_u32 s53, s53, {ZL}
v_add_u32 v47, s53, v47
""")
    for rg in range(4):
        a(f"ds_read_b64_tr_b16 v[{48+2*rg}:{49+2*rg}], v47 offset:{rg*1024}")
    l2e = math.log2(math.e)
    a(f"""
v_lshlrev_b32 v46, 16, v46
v_mul_f32 v44, v44, v45
s_mov_b32 s50, {hx(f2u(-l2e))}
v_lshlrev_b32 v4, 3, v5
v_add_u32 v41, v41, v4
""")
    for rg in range(4):
        u = 16 + 4 * rg; x = 32 + 2 * rg; z = 48 + 2 * rg
        a(f"v_pk_add_f32 v[{u}:{u+1}], v[{u}:{u+1}], v[46:47] op_sel_hi:[1,0]\nv_pk_add_f32 v[{u+2}:{u+3}], v[{u+2}:{u+3}], v[46:47] op_sel_hi:[1,0]")
        for r in range(4): a(f"v_mul_f32 v{56+r}, s50, v{u+r}")
        for r in range(4): a(f"v_exp_f32 v{56+r}, v{56+r}")
        a(f"v_lshlrev_b32 v60, 16, v{x}\nv_and_b32 v61, s30, v{x}\nv_lshlrev_b32 v62, 16, v{x+1}\nv_and_b32 v63, s30, v{x+1}")
        for r in range(4): a(f"v_add_f32 v{56+r}, 1.0, v{56+r}")
        for r in range(4): a(f"v_rcp_f32 v{56+r}, v{56+r}")
        a(f"s_waitcnt lgkmcnt({3-rg})")
        a(f"v_lshlrev_b32 v64, 16, v{z}\nv_and_b32 v65, s30, v{z}\nv_lshlrev_b32 v66, 16, v{z+1}\nv_and_b32 v67, s30, v{z+1}")
        a(f"v_pk_mul_f32 v[{u}:{u+1}], v[{u}:{u+1}], v[56:57]\nv_pk_mul_f32 v[{u+2}:{u+3}], v[{u+2}:{u+3}], v[58:59]")
        for r in range(4): a(f"v_fma_f32 v{56+r}, v{60+r}, v45, -v44")
        a(f"v_pk_mul_f32 v[{u}:{u+1}], v[{u}:{u+1}], v[64:65]\nv_pk_mul_f32 v[{u+2}:{u+3}], v[{u+2}:{u+3}], v[66:67]")
        a(f"v_pk_fma_f32 v[{u}:{u+1}], v[{u}:{u+1}], v[56:57], v[60:61]\nv_pk_fma_f32 v[{u+2}:{u+3}], v[{u+2}:{u+3}], v[58:59], v[62:63]")
        a(f"v_cvt_pk_bf16_f32 v{68+2*rg}, v{u}, v{u+1}\nv_cvt_pk_bf16_f32 v{69+2*rg}, v{u+2}, v{u+3}")
        if rg & 1:
            y = 68 + 2 * (rg - 1)
            a(f"s_nop 1\nv_permlane32_swap_b32 v{y}, v{y+2}\nv_permlane32_swap_b32 v{y+1}, v{y+3}")
            a(f"buffer_store_dwordx4 v[{y}:{y+3}], v41, s[36:39], s51 offen offset:{16*(rg-1)}")
    a("K3_END:")
    return a.text(), 98304

HEADER = open("recurrent_scan__ssm_conv_h3__mixer_token_mlp__prompt.s.ref").read().split("; Override launch")[0]

def kern(name, body, vgpr):
    acc = min(256, (vgpr + 3) // 4 * 4)
    return f""".text
.globl {name}
.p2align 8
.type {name},@function
{name}:
{body}  s_endpgm
.section .rodata,"a"
.p2align 6
.amdhsa_kernel {name}
  .amdhsa_next_free_vgpr {vgpr}
  .amdhsa_next_free_sgpr 102
  .amdhsa_accum_offset {acc}
  .amdhsa_group_segment_fixed_size 0
  .amdhsa_kernarg_size 112
  .amdhsa_user_sgpr_count 2
  .amdhsa_user_sgpr_kernarg_segment_ptr 1
  .amdhsa_system_sgpr_workgroup_id_x 1
.end_amdhsa_kernel
"""

def build(cfg=None):
    cfg = cfg or {}
    k1 = gen_k1(cfg); k2, l2 = gen_k2(cfg); k3, l3 = gen_k3(cfg)
    launches = [("k1_kernel", 480, 256, 7680), ("k2_kernel", 224, 384, l2), ("k3_kernel", 224, 256, l3)]
    extra = ""
    for i in range(cfg.get("nop_kernels", 0)):
        launches.append(("nop_kernel", 256, 256, 0))
    if cfg.get("nop_kernels", 0): extra = kern("nop_kernel", "", 8)
    h = HEADER + "".join(f"; @launch kernel={n} grid=({g},1,1) block=({b},1,1) lds={l}\n" for n, g, b, l in launches)
    return (h + '.amdgcn_target "amdgcn-amd-amdhsa--gfx950"\n' + kern("k1_kernel", k1, 112) + kern("k2_kernel", k2, 208)
            + kern("k3_kernel", k3, 208) + extra)

if __name__ == "__main__":
    out = sys.argv[1] if len(sys.argv) > 1 else "recurrent_scan__ssm_conv_h3__mixer_token_mlp__prompt.s"
    cfg = {}
    for kv in sys.argv[2:]:
        k, v = kv.split("="); cfg[k] = int(v)
    open(out, "w").write(build(cfg))
    print("wrote", out)
```

```python
import sys, math, struct

S, D, F = 2048, 448, 1792
WS_HF, WS_KVT, WS_ST, WS_UF, WS_ZT = 0x0, 0x200000, 0x400000, 0x500000, 0x800000
WS_FA, WS_FU, WS_FZ, WS_EP = 0xA00000, 0xA10000, 0xA20000, 0xA40000
WS_PROF = 0x1000000
WS_SIZE = 0x1100000
SZ_SD = S * D * 2
OOB = 0x80000000
KNAME = "recurrent_scan__ssm_conv_h3__mixer_token_mlp__prompt_kernel"

NR = 6
RW = NR * 2048
L_RED, L_RING = 0, 65536
L_LN, L_ST, L_KVX = 0, 7680, 8192
HC = 4160
CH = 4 * HC + 4608
L_CV = L_RING + 4 * RW
LDS_TOTAL = L_CV + 2 * CH

def f2u(x): return struct.unpack("<I", struct.pack("<f", x))[0]
def hx(x): return f"0x{x & 0xffffffff:x}"
def vr(b, n): return f"v[{b}:{b+n-1}]" if n > 1 else f"v{b}"
def ar(b, n): return f"a[{b}:{b+n-1}]"

class Gen:
    def __init__(self, cfg):
        self.l = []; self.cfg = cfg; self.vm = []; self.lg = []
        self.prof = bool(cfg.get("prof", 0)); self.nst = 0
    def __call__(self, s):
        for ln in s.strip("\n").split("\n"):
            ln = ln.strip()
            if ln: self.l.append(ln if ln.endswith(":") else "  " + ln)
    def text(self): return "\n".join(self.l) + "\n"
    def vmem(self, s, tag): self(s); self.vm.append(tag)
    def lds(self, s, tag): self(s); self.lg.append(tag)
    def _need(self, q, tag):
        if tag not in q: return None
        idx = len(q) - 1 - q[::-1].index(tag)
        n = len(q) - 1 - idx
        del q[:idx + 1]
        return n
    def wvm(self, tag):
        n = self._need(self.vm, tag)
        if n is not None: self(f"s_waitcnt vmcnt({min(n, 62)})")
    def wlg(self, tag):
        n = self._need(self.lg, tag)
        if n is not None: self(f"s_waitcnt lgkmcnt({min(n, 14)})")
    def wall(self, vm=True, lg=True):
        self("s_waitcnt " + " ".join(x for x, y in (("vmcnt(0)", vm), ("lgkmcnt(0)", lg)) if y))
        if vm: self.vm = []
        if lg: self.lg = []
    def srd(self, d, lo, nbytes):
        self(f"s_mov_b32 s{d}, s{lo}\ns_mov_b32 s{d+1}, s{lo+1}\ns_mov_b32 s{d+2}, {hx(nbytes)}\ns_mov_b32 s{d+3}, 0x20000")
    def stamp(self, i):
        if self.prof:
            self(f"s_memrealtime s[98:99]\ns_waitcnt lgkmcnt(0)\nv_writelane_b32 v254, s98, {i}"); self.lg = []
    def flag(self, k): return self.cfg.get(k, 0)
    def nt(self, k, default=1): return " nt" if self.cfg.get(k, default) else ""

SWS, SA, SB, SC, SD_, SW = 32, 36, 40, 44, 48, 52
sWAVE, sX, sK, sMASK = 56, 57, 58, 59
ACC, RNG = 64, 128
vTAG = 255

def allred2(g, va, vb, ta, tb):
    for m in ("quad_perm:[1,0,3,2]", "quad_perm:[2,3,0,1]", "row_half_mirror", "row_mirror"):
        g(f"s_nop 0\nv_add_f32_dpp v{va}, v{va}, v{va} {m} row_mask:0xf bank_mask:0xf\nv_add_f32_dpp v{vb}, v{vb}, v{vb} {m} row_mask:0xf bank_mask:0xf")
    g(f"v_mov_b32 v{ta}, v{va}\nv_mov_b32 v{tb}, v{vb}\ns_nop 0\nv_permlane16_swap_b32 v{ta}, v{va}\nv_permlane16_swap_b32 v{tb}, v{vb}\ns_nop 0")
    g(f"v_add_f32 v{va}, v{va}, v{ta}\nv_add_f32 v{vb}, v{vb}, v{tb}")

def poll(g, name, voffs):
    g(f"s_mov_b32 s60, 0\n{name}_P:")
    for i, v in enumerate(voffs):
        g(f"buffer_load_dword v{250+i}, v{v}, s[{SWS}:{SWS+3}], 0 offen sc1")
    g("s_add_u32 s60, s60, 1\ns_waitcnt vmcnt(0)")
    g(f"v_cmp_ne_u32 vcc, v{vTAG}, v250")
    for i in range(1, len(voffs)):
        g(f"v_cmp_ne_u32 s[62:63], v{vTAG}, v{250+i}\ns_or_b64 vcc, vcc, s[62:63]")
    if len(voffs) == 1: g("s_or_b64 vcc, vcc, vcc")
    g(f"s_cbranch_scc0 {name}_OK\ns_sleep 2\ns_cmp_lt_u32 s60, 0x8000\ns_cbranch_scc1 {name}_P\n{name}_OK:")
    g.vm = []

def gemm_addr(g, pitch, base):
    g(f"""
v_mul_u32_u24 v{base}, {pitch}, v2
v_lshl_add_u32 v{base}, v3, 4, v{base}
v_add_u32 v{base+1}, {8*pitch-1024}, v{base}
""")

class WPhase:
    def __init__(self, g, n, vdma, srd, soff, inc, tag):
        self.g, self.n, self.vd, self.srd, self.so, self.inc, self.tag = g, n, vdma, srd, soff, inc, tag
        self.issued = 0; self.read = 0
    def issue(self):
        g = self.g; i = self.issued
        if i >= self.n: return
        assert i < self.read + NR
        if i >= NR: g.wlg(f"{self.tag}r{i-NR}")
        g(f"s_add_u32 m0, s61, {(i % NR) * 2048}")
        g(f"s_add_u32 s{self.so}, s{self.so}, {self.inc}" if i else "s_nop 0")
        g.vmem(f"buffer_load_dwordx4 v{self.vd}, s[{self.srd}:{self.srd+3}], s{self.so} offen lds", f"{self.tag}d{i}")
        g.vmem(f"buffer_load_dwordx4 v{self.vd+1}, s[{self.srd}:{self.srd+3}], s{self.so} offen offset:1024 lds", f"{self.tag}d{i}")
        self.issued += 1
    def rd(self):
        g = self.g; i = self.read
        g.wvm(f"{self.tag}d{i}")
        for h in range(2):
            for e in range(2):
                g.lds(f"ds_read_b64_tr_b16 {ar(8*i+4*h+2*e, 2)}, v{13+h} offset:{(i % NR)*2048 + e*512}", f"{self.tag}r{i}")
        self.read += 1
    def run(self, upto):
        while self.read < upto:
            self.rd()
            if self.read >= 2 and self.issued < self.read + NR - 1: self.issue()
    def refill(self):
        while self.issued < min(self.n, self.read + NR): self.issue()

def s_phase(g, n, tr_is_A, soff, tail):
    def ld(i):
        r = RNG + 8 * (i % 8)
        if i: g(f"s_add_u32 s{soff}, s{soff}, {2*7168}")
        g.vmem(f"buffer_load_dwordx4 {vr(r,4)}, v12, s[{SWS}:{SWS+3}], s{soff} offen sc1", f"s{i}")
        g.vmem(f"buffer_load_dwordx4 {vr(r+4,4)}, v12, s[{SWS}:{SWS+3}], s{soff} offen offset:512 sc1", f"s{i}")
    for i in range(8): ld(i)
    yield
    for i in range(n):
        g.wvm(f"s{i}")
        r = RNG + 8 * (i % 8)
        for h in range(2):
            for b in range(2):
                q = ACC + 16 * (2 * h + b)
                t = ar(8 * i + 4 * h, 4); d = vr(r + 4 * b, 4)
                x, y = (t, d) if tr_is_A else (d, t)
                g(f"v_mfma_f32_32x32x16_bf16 {vr(q,16)}, {x}, {y}, {vr(q,16) if i else '0'}")
        if i + 8 < n: ld(i + 8)
        else: tail(i + 8 - n)

def reduce4(g):
    g(f"s_lshl_b32 s62, s{sWAVE}, 14\nv_lshlrev_b32 v15, 4, v1\nv_add_u32 v4, s62, v15\ns_lshl_b32 s62, s{sWAVE}, 12\nv_add_u32 v15, s62, v15\ns_nop 7")
    for q in range(4):
        for r in range(4):
            g.lds(f"ds_write_b128 v4, {vr(ACC+16*q+4*r,4)} offset:{L_RED + q*4096 + r*1024}", "rw")
    g.wall(vm=False)
    g("s_barrier")
    for w in range(3):
        for r in range(4):
            g.lds(f"ds_read_b128 {vr(ACC+16*w+4*r,4)}, v15 offset:{L_RED + w*16384 + r*1024}", f"rr{w}{r}")
    for r in range(4):
        g.wlg(f"rr1{r}")
        g.lds(f"ds_read_b128 {vr(ACC+48+4*r,4)}, v15 offset:{L_RED + 3*16384 + r*1024}", f"rr3{r}")
        for h in range(2):
            o = 4 * r + 2 * h
            g(f"v_pk_add_f32 {vr(16+o,2)}, {vr(ACC+o,2)}, {vr(ACC+16+o,2)}")
    for w in (2, 3):
        for r in range(4):
            g.wlg(f"rr{w}{r}")
            for h in range(2):
                o = 4 * r + 2 * h
                g(f"v_pk_add_f32 {vr(16+o,2)}, {vr(16+o,2)}, {vr(ACC+16*w+o,2)}")


def build(cfg):
    g = Gen(cfg)
    ws = f"s[{SWS}:{SWS+3}]"
    g(f"""
s_cmp_ge_u32 s2, 256
s_cbranch_scc1 L_END
s_load_dwordx16 s[4:19], s[0:1], 0
s_load_dwordx8 s[20:27], s[0:1], 64
s_load_dwordx2 s[28:29], s[0:1], 104
v_lshrrev_b32 v2, 6, v0
v_and_b32 v1, 63, v0
v_readfirstlane_b32 s{sWAVE}, v2
s_mov_b32 s{sMASK}, 0xffff0000
s_and_b32 s{sX}, s2, 7
s_lshr_b32 s{sK}, s2, 3
""")
    if g.prof: g("s_memrealtime s[98:99]")
    g(f"""
v_lshrrev_b32 v5, 5, v1
v_and_b32 v6, 31, v1
v_mov_b32 v7, {hx(WS_EP)}
s_cmp_ge_u32 s{sWAVE}, 2
s_cbranch_scc1 L_LN
""")
    g(f"""
s_mul_i32 s93, s2, 9363
s_lshr_b32 s93, s93, 16
s_mul_i32 s94, s93, 7
s_sub_u32 s94, s2, s94
v_lshrrev_b32 v2, 3, v1
v_and_b32 v3, 7, v1
s_lshl_b32 s64, s93, 3
v_add_u32 v64, s64, v2
s_lshl_b32 s65, s94, 4
s_lshl_b32 s66, s{sWAVE}, 3
s_add_u32 s65, s65, s66
v_add_u32 v65, s65, v3
v_mul_u32_u24 v66, 7168, v64
v_lshl_add_u32 v66, v65, 3, v66
v_add_u32 v67, 3584, v66
v_subrev_u32 v68, 2688, v66
v_mov_b32 v69, {hx(OOB)}
v_cmp_eq_u32 vcc, 0, v64
v_lshlrev_b32 v70, 5, v65
s_cmp_ge_u32 s2, 224
v_cndmask_b32 v68, v68, v69, vcc
s_waitcnt lgkmcnt(0)
""")
    if g.prof: g("v_mov_b32 v254, 0\nv_writelane_b32 v254, s98, 0")
    g.srd(SWS, 28, WS_SIZE)
    g.vmem(f"buffer_load_dword v{vTAG}, v7, {ws}, 0 offen sc1", "tag")
    g("s_cbranch_scc1 L_KVSKIP")
    g.srd(SA, 6, SZ_SD); g.srd(SB, 8, SZ_SD); g.srd(SC, 10, D * 8)
    sa, sb, sc_ = (f"s[{x}:{x+3}]" for x in (SA, SB, SC))
    g.vmem(f"buffer_load_dwordx4 v[72:75], v70, {sc_}, 0 offen", "sk")
    g.vmem(f"buffer_load_dwordx4 v[76:79], v70, {sc_}, 0 offen offset:16", "sk")
    KR, VR_ = 80, 102
    for j in range(3):
        g.vmem(f"buffer_load_dwordx2 {vr(KR+2*j,2)}, v68, {sa}, 0 offen offset:{896*j}{g.nt('nt_kv')}", "k")
    for j in range(8):
        g.vmem(f"buffer_load_dwordx2 {vr(KR+6+2*j,2)}, v{66 + j//4}, {sa}, 0 offen offset:{896*(j%4)}{g.nt('nt_kv')}", "k")
    for j in range(8):
        g.vmem(f"buffer_load_dwordx2 {vr(VR_+2*j,2)}, v{66 + j//4}, {sb}, 0 offen offset:{896*(j%4)}{g.nt('nt_kv')}", "v")
    g("L_KVSKIP:")
    g("s_barrier")
    nmisc = misc_loads(g)
    g("s_cmp_ge_u32 s2, 224\ns_cbranch_scc1 L_A1")
    g(f"""
s_lshl_b32 s66, s{sWAVE}, 12
s_add_u32 s66, s66, {L_KVX}
v_xor_b32 v71, v2, v3
v_lshlrev_b32 v71, 4, v71
v_lshl_add_u32 v71, v3, 9, v71
v_add_u32 v71, s66, v71
v_lshlrev_b32 v118, 4, v1
v_add_u32 v118, s66, v118
v_lshrrev_b32 v119, 5, v1
v_xor_b32 v119, v119, v3
s_lshl_b32 s64, s94, 6
s_lshl_b32 s66, s{sWAVE}, 5
s_add_u32 s64, s64, s66
s_lshl_b32 s64, s64, 12
s_lshl_b32 s66, s93, 7
s_add_u32 s64, s64, s66
s_add_u32 s64, s64, {hx(WS_KVT)}
""")
    for i in range(4):
        g(f"v_xor_b32 v{120+i}, {2*i}, v119\nv_lshlrev_b32 v{120+i}, 4, v{120+i}\nv_add_u32 v124, {8*i}, v2\nv_lshl_add_u32 v{120+i}, v124, 12, v{120+i}")
    g.wvm("sk")
    W = 128
    for p in range(2):
        a0, a1, b0, b1 = 72 + 4*p, 73 + 4*p, 74 + 4*p, 75 + 4*p
        o = W + 8 * p
        g(f"v_lshlrev_b32 v{o}, 16, v{a0}\nv_lshlrev_b32 v{o+1}, 16, v{b0}\nv_and_b32 v{o+2}, s{sMASK}, v{a0}\nv_and_b32 v{o+3}, s{sMASK}, v{b0}")
        g(f"v_lshlrev_b32 v{o+4}, 16, v{a1}\nv_lshlrev_b32 v{o+5}, 16, v{b1}\nv_and_b32 v{o+6}, s{sMASK}, v{a1}\nv_and_b32 v{o+7}, s{sMASK}, v{b1}")
    g.wvm("k")
    KU, O = 144, 16
    for p in range(2):
        for r in range(11):
            g(f"v_lshlrev_b32 v{KU+2*r}, 16, v{KR+2*r+p}\nv_and_b32 v{KU+2*r+1}, s{sMASK}, v{KR+2*r+p}")
        for t in range(4):
            for j in range(8):
                o = 220 + 16 * p + 2 * j; r = j + 3 - t
                if t == 0: g(f"v_pk_mul_f32 {vr(o,2)}, {vr(KU+2*r,2)}, {vr(W+8*p,2)}")
                else: g(f"v_pk_fma_f32 {vr(o,2)}, {vr(KU+2*r,2)}, {vr(W+8*p+2*t,2)}, {vr(o,2)}")
    g.wvm("v")
    for p in range(2):
        for j in range(8):
            g(f"v_lshlrev_b32 v{KU+2*j}, 16, v{VR_+2*j+p}\nv_and_b32 v{KU+2*j+1}, s{sMASK}, v{VR_+2*j+p}")
        for j in range(8):
            o = 220 + 16 * p + 2 * j
            g(f"v_pk_mul_f32 {vr(o,2)}, {vr(o,2)}, {vr(KU+2*j,2)}")
        for c in range(2):
            u = KR + 8 * p + 4 * c
            for m in range(4):
                g(f"v_cvt_pk_bf16_f32 v{u+m}, v{220+16*p+2*(7-2*m)+c}, v{220+16*p+2*(6-2*m)+c}")
            g.lds(f"ds_write_b128 v71, {vr(u,4)} offset:{(2*p+c)*128}", "kw")
    g.wlg("kw")
    for i in range(4):
        g.lds(f"ds_read_b128 {vr(KR+4*i,4)}, v118 offset:{i*1024}", f"kr{i}")
    for i in range(4):
        g.wlg(f"kr{i}")
        g.vmem(f"buffer_store_dwordx4 {vr(KR+4*i,4)}, v{120+i}, {ws}, s64 offen sc1", "kst")
    g("s_branch L_A1")
    g.vm = []; g.lg = []
    LP = 960
    g(f"""
L_LN:
s_sub_u32 s62, s{sWAVE}, 2
s_lshl_b32 s62, s62, 2
v_add_u32 v64, s62, v5
s_lshl_b32 s63, s2, 3
v_add_u32 v65, s63, v64
v_mul_u32_u24 v66, 896, v65
v_lshl_add_u32 v66, v6, 4, v66
v_cmp_gt_u32 vcc, 28, v6
v_mov_b32 v67, {hx(OOB)}
v_mul_u32_u24 v69, {LP}, v64
v_cndmask_b32 v66, v67, v66, vcc
v_cndmask_b32 v68, 0, 1.0, vcc
s_mov_b64 s[64:65], vcc
s_waitcnt lgkmcnt(0)
""")
    if g.prof: g("v_mov_b32 v254, 0\nv_writelane_b32 v254, s98, 0")
    g.srd(SWS, 28, WS_SIZE); g.srd(SA, 4, SZ_SD)
    g.vmem(f"buffer_load_dword v{vTAG}, v7, {ws}, 0 offen sc1", "tag")
    for p in range(2):
        g.vmem(f"buffer_load_dwordx4 {vr(72+8*p,4)}, v66, {sa}, 0 offen offset:{1792*p}{g.nt('nt_x')}", f"x{p}")
        g.vmem(f"buffer_load_dwordx4 {vr(76+8*p,4)}, v66, {sa}, 0 offen offset:{1792*p+448}{g.nt('nt_x')}", f"x{p}")
    g("s_barrier")
    misc_loads(g)
    g(f"v_lshl_add_u32 v69, v6, 4, v69\nv_lshlrev_b32 v70, 3, v64")
    U = [96, 128]; T = [112, 144]
    for p in range(2):
        g.wvm(f"x{p}")
        for i in range(8):
            g(f"v_lshlrev_b32 v{U[p]+2*i}, 16, v{72+8*p+i}\nv_and_b32 v{U[p]+2*i+1}, s{sMASK}, v{72+8*p+i}")
        u, t = U[p], T[p]
        g(f"v_pk_add_f32 {vr(t,2)}, {vr(u,2)}, {vr(u+2,2)}\nv_pk_add_f32 {vr(t+2,2)}, {vr(u+4,2)}, {vr(u+6,2)}")
        g(f"v_pk_add_f32 {vr(t+4,2)}, {vr(u+8,2)}, {vr(u+10,2)}\nv_pk_add_f32 {vr(t+6,2)}, {vr(u+12,2)}, {vr(u+14,2)}")
        g(f"v_pk_add_f32 {vr(t,2)}, {vr(t,2)}, {vr(t+2,2)}\nv_pk_add_f32 {vr(t+4,2)}, {vr(t+4,2)}, {vr(t+6,2)}")
        g(f"v_pk_add_f32 {vr(t,2)}, {vr(t,2)}, {vr(t+4,2)}\nv_add_f32 v{t}, v{t}, v{t+1}")
    allred2(g, T[0], T[1], T[0]+1, T[1]+1)
    for p in range(2):
        u, t = U[p], T[p]
        g(f"v_mul_f32 v{t}, {hx(f2u(1.0/D))}, v{t}")
        for i in range(8):
            g(f"v_pk_add_f32 {vr(u+2*i,2)}, {vr(u+2*i,2)}, {vr(t,2)} op_sel_hi:[1,0] neg_lo:[0,1] neg_hi:[0,1]")
        g(f"v_pk_mul_f32 {vr(t+2,2)}, {vr(u,2)}, {vr(u,2)}\nv_pk_mul_f32 {vr(t+4,2)}, {vr(u+2,2)}, {vr(u+2,2)}")
        for i in range(2, 8):
            r = t + 2 + 2 * (i % 2)
            g(f"v_pk_fma_f32 {vr(r,2)}, {vr(u+2*i,2)}, {vr(u+2*i,2)}, {vr(r,2)}")
        g(f"v_pk_add_f32 {vr(t+2,2)}, {vr(t+2,2)}, {vr(t+4,2)}\nv_add_f32 v{t+2}, v{t+2}, v{t+3}\nv_mul_f32 v{t+2}, v{t+2}, v68")
    allred2(g, T[0]+2, T[1]+2, T[0]+3, T[1]+3)
    eps = hx(f2u(1e-5))
    for ins in ("v_mul_f32 v{t2}, {c}, v{t2}", "v_add_f32 v{t3}, {eps}, v{t2}", "v_rsq_f32 v{t1}, v{t3}", "v_mul_f32 v{t4}, v{t1}, v{t1}",
                "v_fmaak_f32 v{t4}, v{t4}, v{t2}, {eps}", "v_rsq_f32 v{t4}, v{t4}", "v_mul_f32 v{t4}, v{t4}, v{t1}"):
        for p in range(2):
            t = T[p]; g(ins.format(t1=t+1, t2=t+2, t3=t+3, t4=t+4, c=hx(f2u(1.0/D)), eps=eps))
    for p in range(2):
        u, t = U[p], T[p]
        for i in range(8):
            g(f"v_pk_mul_f32 {vr(u+2*i,2)}, {vr(u+2*i,2)}, {vr(t+4,2)} op_sel_hi:[1,0]")
        for i in range(8):
            g(f"v_cvt_pk_bf16_f32 v{160+8*p+i}, v{u+2*i}, v{u+2*i+1}")
    g("s_mov_b64 exec, s[64:65]")
    for p in range(2):
        g(f"ds_write_b128 v69, {vr(160+8*p,4)} offset:{L_LN + 2*p*LP}\nds_write_b128 v69, {vr(164+8*p,4)} offset:{L_LN + 2*p*LP+448}")
    g(f"v_cmp_eq_u32 vcc, 0, v6\ns_and_b64 exec, exec, vcc")
    for p in range(2):
        g(f"ds_write_b64 v70, {vr(T[p],2)} offset:{L_ST + 16*p}")
    g("s_mov_b64 exec, -1")
    g.vm = []; g.lg = []
    g(f"""
L_A1:
v_bfe_u32 v64, v1, 2, 2
v_mul_u32_u24 v64, {LP}, v64
v_lshrrev_b32 v65, 4, v0
v_lshl_add_u32 v64, v65, 5, v64
v_and_b32 v65, 3, v1
v_lshl_add_u32 v64, v65, 3, v64
v_lshlrev_b32 v66, 4, v0
s_mul_i32 s62, s2, 7168
s_add_u32 s63, s62, 4096
v_lshlrev_b32 v67, 3, v1
s_lshl_b32 s64, s2, 6
s_add_u32 s64, s64, {hx(WS_ST)}
s_waitcnt lgkmcnt(0)
s_barrier
""")
    g.stamp(1)
    g(f"""
ds_read_b64_tr_b16 v[72:73], v64 offset:{L_LN}
ds_read_b64_tr_b16 v[74:75], v64 offset:{L_LN + 4*LP}
s_cmp_eq_u32 s{sWAVE}, 3
s_cbranch_scc1 L_A2
ds_read_b64_tr_b16 v[76:77], v64 offset:{L_LN + 512}
ds_read_b64_tr_b16 v[78:79], v64 offset:{L_LN + 4*LP + 512}
s_waitcnt lgkmcnt(0)
buffer_store_dwordx4 v[76:79], v66, {ws}, s63 offen sc1
s_branch L_A3
L_A2:
ds_read_b128 v[76:79], v66 offset:{L_ST - 3072}
s_waitcnt lgkmcnt(0)
s_mov_b64 exec, 15
v_lshlrev_b32 v67, 4, v1
buffer_store_dwordx4 v[76:79], v67, {ws}, s64 offen sc1
s_mov_b64 exec, -1
L_A3:
""")
    g.vmem(f"buffer_store_dwordx4 v[72:75], v66, {ws}, s62 offen sc1", "hst")
    g(f"""
v_lshrrev_b32 v2, 3, v1
v_and_b32 v3, 7, v1
v_lshrrev_b32 v4, 2, v1
v_and_b32 v4, 4, v4
v_xor_b32 v3, v3, v4
""")
    gemm_addr(g, 3584, 10); gemm_addr(g, 4096, 8)
    g(f"""
v_mul_u32_u24 v12, 7168, v5
v_lshl_add_u32 v12, v6, 4, v12
s_mul_i32 s61, s{sWAVE}, {RW}
s_add_u32 s61, s61, {L_RING}
v_bfe_u32 v7, v1, 2, 2
v_lshl_add_u32 v4, v5, 3, v7
v_lshlrev_b32 v13, 7, v4
v_bfe_u32 v4, v1, 4, 1
v_and_b32 v7, 2, v7
v_xor_b32 v4, v4, v7
v_lshl_add_u32 v13, v4, 5, v13
v_and_b32 v7, 3, v1
v_lshl_add_u32 v13, v7, 3, v13
v_add_u32 v13, s61, v13
v_xor_b32 v14, 64, v13
s_mul_i32 s67, s{sWAVE}, {448*4096}
s_lshl_b32 s62, s86, 7
s_add_u32 s67, s67, s62
""")
    g.srd(SD_, 22, S * F * 2)
    g(f"""
s_lshl_b32 s62, s2, 7
s_add_u32 s62, s62, {hx(WS_FA)}
v_mov_b32 v249, s62
s_cmp_lt_u32 s{sK}, s83
s_cbranch_scc0 L_NOG1
""")
    g(f"s_mul_i32 s66, s{sWAVE}, {512*3584}\ns_lshl_b32 s62, s84, 7\ns_add_u32 s66, s66, s62")
    W1 = WPhase(g, 32, 10, SW, 66, 16 * 3584, "w1")
    W1.refill()
    def flagA():
        g.wvm("hst")
        g(f"v_add_u32 v{vTAG}, 1, v{vTAG}\ns_barrier")
        g(f"s_cmp_lg_u32 s{sWAVE}, 0\ns_cbranch_scc1 {lab('FA')}\ns_mov_b64 exec, 1\nbuffer_store_dword v{vTAG}, v249, {ws}, 0 offen sc1\ns_mov_b64 exec, -1\n{lab('FA', True)}:")
    cnt = [0]
    def lab(p, last=False):
        if not last: cnt[0] += 1
        return f"L_{p}{cnt[0]}"
    flagA()
    g.vm.append("flag")
    g.vm.remove("flag")
    g.stamp(2)
    conv_prep(g)
    W1.run(32)
    g.stamp(3)
    pollA(g, "PA")
    g.stamp(4)
    kv_dma(g)
    g(f"s_mul_i32 s68, s{sWAVE}, {64*7168}\ns_lshl_b32 s62, s85, 10\ns_add_u32 s68, s68, s62")
    W2 = WPhase(g, 28, 8, SD_, 67, 16 * 4096, "w2")
    def tail1(j):
        if j < NR: W2.issue()
    sp = s_phase(g, 32, True, 68, tail1)
    next(sp)
    g.wall(vm=False)
    for _ in sp: pass
    g.stamp(5)
    reduce4(g)
    g.stamp(6)
    c = math.sqrt(2 / math.pi); l2e = math.log2(math.e)
    k0 = -2 * c * l2e; k1 = k0 * 0.044715
    g(f"""
s_mov_b32 s62, {hx(f2u(k1))}
v_mov_b32 v52, {hx(f2u(k0))}
s_lshr_b32 s63, s{sWAVE}, 1
s_lshl_b32 s64, s84, 3
s_lshl_b32 s63, s63, 2
s_add_u32 s64, s64, s63
s_mul_i32 s64, s64, 7168
s_lshl_b32 s63, s85, 10
s_add_u32 s64, s64, s63
s_and_b32 s63, s{sWAVE}, 1
s_lshl_b32 s63, s63, 9
s_add_u32 s64, s64, s63
s_add_u32 s64, s64, {hx(WS_UF)}
s_add_u32 s65, s64, {2*7168}
""")
    for rg in range(4):
        b = 32 + 2 * rg; u = 16 + 4 * rg
        g(f"v_lshlrev_b32 v56, 16, v{b}\nv_and_b32 v57, s{sMASK}, v{b}\nv_lshlrev_b32 v58, 16, v{b+1}\nv_and_b32 v59, s{sMASK}, v{b+1}")
        g(f"v_pk_add_f32 {vr(u,2)}, {vr(u,2)}, v[56:57]\nv_pk_add_f32 {vr(u+2,2)}, {vr(u+2,2)}, v[58:59]")
        g(f"v_pk_mul_f32 v[56:57], {vr(u,2)}, {vr(u,2)}\nv_pk_mul_f32 v[58:59], {vr(u+2,2)}, {vr(u+2,2)}")
        for r in range(4): g(f"v_fma_f32 v{56+r}, v{56+r}, s62, v52")
        g(f"v_pk_mul_f32 v[56:57], v[56:57], {vr(u,2)}\nv_pk_mul_f32 v[58:59], v[58:59], {vr(u+2,2)}")
        for r in range(4): g(f"v_exp_f32 v{56+r}, v{56+r}")
        for r in range(4): g(f"v_add_f32 v{56+r}, 1.0, v{56+r}")
        for r in range(4): g(f"v_rcp_f32 v{56+r}, v{56+r}")
        g("s_nop 0")
        g(f"v_pk_mul_f32 v[56:57], v[56:57], {vr(u,2)}\nv_pk_mul_f32 v[58:59], v[58:59], {vr(u+2,2)}")
        g(f"v_cvt_pk_bf16_f32 v{b}, v56, v57\nv_cvt_pk_bf16_f32 v{b+1}, v58, v59")
        if rg & 1:
            x = b - 2
            g(f"s_nop 1\nv_permlane32_swap_b32 v{x}, v{x+2}\nv_permlane32_swap_b32 v{x+1}, v{x+3}")
            g.vmem(f"buffer_store_dwordx4 {vr(x,4)}, v12, {ws}, s{64 + rg//2} offen sc1", "ust")
    g.stamp(7)
    g(f"s_lshl_b32 s62, s82, 7\ns_add_u32 s62, s62, {hx(WS_FU)}\nv_mov_b32 v249, s62")
    for i in range(NR): W2.rd()
    W2.refill()
    g.wvm("ust")
    g("s_barrier")
    g(f"s_cmp_lg_u32 s{sWAVE}, 0\ns_cbranch_scc1 L_MID\ns_mov_b64 exec, 1\nbuffer_store_dword v{vTAG}, v249, {ws}, 0 offen sc1\ns_mov_b64 exec, -1\ns_branch L_MID")
    mid_vm, mid_lg = list(g.vm), list(g.lg)
    g.vm = ["hst"]; g.lg = []
    g("L_NOG1:")
    flagA()
    g.stamp(2)
    g(f"s_cmp_ge_u32 s{sK}, 28\ns_cbranch_scc1 L_HELP")
    conv_prep(g)
    g.stamp(3)
    pollA(g, "PD")
    g.stamp(4)
    kv_dma(g)
    W2d = WPhase(g, 28, 8, SD_, 67, 16 * 4096, "w2")
    W2d.refill()
    for i in range(NR): W2d.rd()
    W2d.refill()
    g("s_barrier")
    assert g.vm == mid_vm and g.lg == mid_lg, (g.vm, mid_vm, g.lg, mid_lg)
    g("L_MID:")
    g.stamp(8)
    CA, CB = 96, 128
    def rdA(t):
        g.lds(f"ds_read_b64 {vr(CA+4*t,2)}, v192 offset:{512*t}", f"A{t}")
        g.lds(f"ds_read_b64 {vr(CA+4*t+2,2)}, v192 offset:{512*t+8}", f"A{t}")
    def rdB(u): g.lds(f"ds_read_b128 {vr(CB+4*u,4)}, v193 offset:{512*u}", f"B{u}")
    def mf(acc, x, y, c=None):
        g(f"v_mfma_f32_16x16x32_bf16 {vr(ACC+4*acc,4)}, {x}, {y}, {c if c is not None else vr(ACC+4*acc,4)}")
    for u in range(8): rdB(u)
    for t in range(7, 4, -1): rdA(t)
    for u in range(8):
        g.wlg(f"B{u}")
        mf(u, "v[196:199]", vr(CB + 4 * u, 4), "0")
        if u < 5: rdA(4 - u)
    for it in range(4):
        last = it == 3
        if not last: g("v_add_u32 v192, 64, v192\nv_subrev_u32 v193, 64, v193")
        for t in range(7, -1, -1):
            g.wlg(f"A{t}")
            for u in range(0, 8 - t):
                g.wlg(f"B{u}")
                mf(t + u, vr(CA + 4 * t, 4), vr(CB + 4 * u, 4))
                if t == 0 and not last: rdB(u)
            if not last: rdA(t)
        if not last:
            for i in range(NR): W2.rd()
            W2.refill()
    g.stamp(9)
    g(f"""
s_xor_b32 s62, s{sWAVE}, 1
s_lshl_b32 s62, s62, 14
v_lshlrev_b32 v15, 4, v1
v_add_u32 v4, s62, v15
s_lshl_b32 s62, s{sWAVE}, 14
v_add_u32 v15, s62, v15
s_bitcmp1_b32 s{sWAVE}, 0
s_nop 4
s_cbranch_scc1 L_ZX1
""")
    for r in range(4): g(f"ds_write_b128 v4, {vr(ACC+16+4*r,4)} offset:{L_RED + r*1024}")
    g("s_branch L_ZX2\nL_ZX1:")
    for r in range(4): g(f"ds_write_b128 v4, {vr(ACC+4*r,4)} offset:{L_RED + r*1024}")
    g("s_waitcnt lgkmcnt(0)")
    for r in range(0, 16, 2): g(f"v_mov_b64 {vr(ACC+r,2)}, {vr(ACC+16+r,2)}")
    g("L_ZX2:")
    g.wall(vm=False)
    g("s_barrier")
    for r in range(4): g.lds(f"ds_read_b128 {vr(ACC+16+4*r,4)}, v15 offset:{L_RED + r*1024}", f"zx{r}")
    for r in range(4):
        g.wlg(f"zx{r}")
        q = ACC + 4 * r
        g(f"v_pk_add_f32 {vr(q,2)}, {vr(q,2)}, {vr(q+16,2)}\nv_pk_add_f32 {vr(q+2,2)}, {vr(q+2,2)}, {vr(q+18,2)}")
        z = ACC + 32 + 2 * r
        g(f"v_cvt_pk_bf16_f32 v{z}, v{q}, v{q+1}\nv_cvt_pk_bf16_f32 v{z+1}, v{q+2}, v{q+3}")
        if r & 1:
            g(f"s_nop 1\nv_permlane16_swap_b32 v{z-2}, v{z}\nv_permlane16_swap_b32 v{z-1}, v{z+1}")
            g.vmem(f"buffer_store_dwordx4 {vr(z-2,4)}, v194, {ws}, s69 offen offset:{512*(r-1)} sc1", "zst")
    W2.run(28)
    g.stamp(10)
    g(f"""
s_mul_i32 s62, s{sWAVE}, 49
s_add_u32 s62, s62, s87
v_min_u32 v4, 6, v1
v_mul_u32_u24 v4, 7, v4
v_add_u32 v4, s62, v4
v_lshlrev_b32 v4, 7, v4
v_add_u32 v4, {hx(WS_FU)}, v4
""")
    poll(g, "PU", [4])
    g.stamp(11)
    g(f"""
s_lshl_b32 s62, s2, 2
s_add_u32 s62, s62, s{sWAVE}
s_lshl_b32 s62, s62, 7
s_add_u32 s62, s62, {hx(WS_FZ)}
v_mov_b32 v249, s62
s_mov_b64 exec, 1
buffer_store_dword v{vTAG}, v249, {ws}, 0 offen sc1
s_mov_b64 exec, -1
s_mul_i32 s68, s{sWAVE}, {56*7168}
s_lshl_b32 s62, s87, 10
s_add_u32 s68, s68, s62
s_add_u32 s68, s68, {hx(WS_UF)}
""")
    g(f"""
s_lshl_b32 s62, s87, 6
s_lshl_b32 s63, s{sWAVE}, 4
s_add_u32 s62, s62, s63
s_lshl_b32 s64, s62, 12
s_lshl_b32 s63, s86, 7
s_add_u32 s64, s64, s63
s_add_u32 s64, s64, {hx(WS_ZT)}
s_lshl_b32 s62, s62, 1
s_lshr_b32 s63, s86, 4
s_add_u32 s62, s62, s63
s_lshl_b32 s62, s62, 7
s_add_u32 s62, s62, {hx(WS_FZ)}
v_and_b32 v7, 15, v1
v_lshlrev_b32 v7, 8, v7
v_add_u32 v7, s62, v7
""")
    def tail2(j):
        if j == 0:
            g.vmem(f"buffer_load_dwordx2 v[50:51], v49, {ws}, 0 offen sc1", "st")
    sp = s_phase(g, 28, False, 68, tail2)
    next(sp)
    g.wall(vm=False)
    for _ in sp: pass
    g.stamp(12)
    poll(g, "PZ", [7])
    g("s_mov_b32 m0, s61\ns_nop 0")
    g(f"buffer_load_dwordx4 v8, {ws}, s64 offen sc1 lds\nbuffer_load_dwordx4 v9, {ws}, s64 offen offset:1024 sc1 lds")
    g.stamp(13)
    g.wall()
    reduce4(g)
    g.stamp(14)
    g.srd(SA, 26, SZ_SD)
    g(f"""
v_subrev_u32 v53, s61, v13
v_lshlrev_b32 v54, 9, v5
v_sub_u32 v53, v53, v54
s_lshr_b32 s62, s{sWAVE}, 1
s_lshl_b32 s62, s62, 6
v_xor_b32 v53, s62, v53
s_and_b32 s62, s{sWAVE}, 1
s_mul_i32 s62, s62, {2*RW}
s_add_u32 s62, s62, {L_RING}
v_add_u32 v53, s62, v53
""")
    for rg in range(4):
        g.lds(f"ds_read_b64_tr_b16 {vr(32+2*rg,2)}, v53 offset:{(rg>>1)*RW + (rg&1)*1024}", f"z{rg}")
    g(f"""
v_lshlrev_b32 v48, 16, v48
v_mul_f32 v50, v50, v51
s_mov_b32 s62, {hx(f2u(-l2e))}
v_lshlrev_b32 v4, 3, v5
v_add_u32 v195, v195, v4
""")
    for rg in range(4):
        u = 16 + 4 * rg; x = 40 + 2 * rg; z = 32 + 2 * rg
        g(f"v_pk_add_f32 {vr(u,2)}, {vr(u,2)}, v[48:49] op_sel_hi:[1,0]\nv_pk_add_f32 {vr(u+2,2)}, {vr(u+2,2)}, v[48:49] op_sel_hi:[1,0]")
        for r in range(4): g(f"v_mul_f32 v{56+r}, s62, v{u+r}")
        for r in range(4): g(f"v_exp_f32 v{56+r}, v{56+r}")
        g(f"v_lshlrev_b32 v60, 16, v{x}\nv_and_b32 v61, s{sMASK}, v{x}\nv_lshlrev_b32 v62, 16, v{x+1}\nv_and_b32 v63, s{sMASK}, v{x+1}")
        for r in range(4): g(f"v_add_f32 v{56+r}, 1.0, v{56+r}")
        for r in range(4): g(f"v_rcp_f32 v{56+r}, v{56+r}")
        g.wlg(f"z{rg}")
        g(f"v_lshlrev_b32 v64, 16, v{z}\nv_and_b32 v65, s{sMASK}, v{z}\nv_lshlrev_b32 v66, 16, v{z+1}\nv_and_b32 v67, s{sMASK}, v{z+1}")
        g(f"v_pk_mul_f32 {vr(u,2)}, {vr(u,2)}, v[56:57]\nv_pk_mul_f32 {vr(u+2,2)}, {vr(u+2,2)}, v[58:59]")
        for r in range(4): g(f"v_fma_f32 v{56+r}, v{60+r}, v51, -v50")
        g(f"v_pk_mul_f32 {vr(u,2)}, {vr(u,2)}, v[64:65]\nv_pk_mul_f32 {vr(u+2,2)}, {vr(u+2,2)}, v[66:67]")
        g(f"v_pk_fma_f32 {vr(u,2)}, {vr(u,2)}, v[56:57], v[60:61]\nv_pk_fma_f32 {vr(u+2,2)}, {vr(u+2,2)}, v[58:59], v[62:63]")
        g(f"v_cvt_pk_bf16_f32 v{68+2*rg}, v{u}, v{u+1}\nv_cvt_pk_bf16_f32 v{69+2*rg}, v{u+2}, v{u+3}")
        if rg & 1:
            y = 68 + 2 * (rg - 1)
            g(f"s_nop 1\nv_permlane32_swap_b32 v{y}, v{y+2}\nv_permlane32_swap_b32 v{y+1}, v{y+3}")
            g(f"buffer_store_dwordx4 {vr(y,4)}, v195, s[{SA}:{SA+3}], s88 offen offset:{16*(rg-1)}")
    g.stamp(15)
    g(f"""
s_or_b32 s62, s2, s{sWAVE}
s_cmp_lg_u32 s62, 0
s_cbranch_scc1 L_FIN
v_mov_b32 v7, {hx(WS_EP)}
s_mov_b64 exec, 1
buffer_store_dword v{vTAG}, v7, {ws}, 0 offen sc1
s_branch L_FIN
""")
    g(f"""
L_HELP:
s_sub_u32 s62, s{sK}, 28
s_lshl_b32 s62, s62, 16
s_mul_i32 s63, s{sWAVE}, {448*4096}
s_add_u32 s62, s62, s63
s_lshl_b32 s63, s{sX}, 9
s_add_u32 s62, s62, s63
v_lshrrev_b32 v2, 2, v1
v_lshlrev_b32 v2, 12, v2
v_and_b32 v3, 3, v1
v_lshl_add_u32 v2, v3, 7, v2
""")
    for i in range(7):
        g(f"buffer_load_dword v{64+i}, v2, s[{SD_}:{SD_+3}], s62 offen{g.nt('nt_pf')}\ns_add_u32 s62, s62, {4*16*4096}")
    g("L_FIN:")
    if g.prof:
        g("s_waitcnt vmcnt(0)"); g.stamp(16)
        g(f"s_mov_b64 exec, 0xffffffff\ns_mov_b32 exec_hi, 0\ns_lshl_b32 s62, s2, 2\ns_add_u32 s62, s62, s{sWAVE}\ns_lshl_b32 s62, s62, 7\ns_add_u32 s62, s62, {hx(WS_PROF)}\nv_lshlrev_b32 v7, 2, v1")
        g(f"buffer_store_dword v254, v7, {ws}, s62 offen")
    g("L_END:")
    return g.text()

def misc_loads(g):
    g(f"""
s_and_b32 s62, s{sX}, 1
s_sub_u32 s83, 25, s62
s_mul_i32 s82, s{sX}, 49
s_add_u32 s82, s82, 1
s_lshr_b32 s82, s82, 1
s_add_u32 s82, s82, s{sK}
s_mul_i32 s84, s82, 9363
s_lshr_b32 s84, s84, 16
s_mul_i32 s85, s84, 7
s_sub_u32 s85, s82, s85
s_mul_i32 s86, s{sK}, 9363
s_lshr_b32 s86, s86, 16
s_mul_i32 s87, s86, 7
s_sub_u32 s87, s{sK}, s87
s_lshl_b32 s89, s{sX}, 2
s_add_u32 s86, s86, s89
""")
    g.srd(SW, 18, S * F * 2)
    g.srd(SD_, 12, SZ_SD)
    sd = f"s[{SD_}:{SD_+3}]"
    g(f"""
s_lshr_b32 s89, s{sWAVE}, 1
s_lshl_b32 s90, s2, 1
s_add_u32 s90, s90, s89
s_lshl_b32 s69, s90, 12
s_min_u32 s91, s69, {SZ_SD}
s_and_b32 s89, s{sWAVE}, 1
s_lshl_b32 s89, s89, 11
v_lshlrev_b32 v200, 4, v1
v_add_u32 v200, s89, v200
v_add_u32 v201, 1016, v200
v_subrev_u32 v202, 8, v200
v_mov_b32 v203, {hx(OOB)}
v_cmp_eq_u32 vcc, 0, v200
s_lshl_b32 s90, s90, 1
v_mov_b32 v204, s90
v_cndmask_b32 v202, v202, v203, vcc
""")
    nth = g.nt('nt_h')
    g.vmem(f"buffer_load_dwordx2 v[206:207], v202, {sd}, s91 offen{nth}", "m")
    g.vmem(f"buffer_load_dwordx4 v[208:211], v200, {sd}, s91 offen{nth}", "m")
    g.vmem(f"buffer_load_dwordx2 v[212:213], v201, {sd}, s91 offen{nth}", "m")
    g.vmem(f"buffer_load_dwordx4 v[214:217], v200, {sd}, s91 offen offset:1024{nth}", "m")
    g.srd(SD_, 14, D * 2)
    g.vmem(f"buffer_load_ushort v205, v204, {sd}, 0 offen", "m")
    g.srd(SD_, 20, F * 2)
    g(f"s_lshl_b32 s89, s84, 7\ns_lshr_b32 s90, s{sWAVE}, 1\ns_lshl_b32 s90, s90, 6\ns_add_u32 s89, s89, s90\ns_min_u32 s89, s89, {F*2}\nv_lshlrev_b32 v203, 3, v5")
    for rg in range(4):
        g.vmem(f"buffer_load_dwordx2 {vr(32+2*rg,2)}, v203, {sd}, s89 offen offset:{16*rg}", "m")
    g.srd(SD_, 4, SZ_SD)
    g(f"""
s_lshl_b32 s89, s86, 6
s_lshr_b32 s90, s90, 1
s_add_u32 s89, s89, s90
v_add_u32 v49, s89, v6
v_mul_u32_u24 v195, 896, v49
v_add_u32 v195, v195, v203
s_lshl_b32 s88, s87, 7
s_and_b32 s90, s{sWAVE}, 1
s_lshl_b32 s90, s90, 6
s_add_u32 s88, s88, s90
""")
    for rg in range(4):
        g.vmem(f"buffer_load_dwordx2 {vr(40+2*rg,2)}, v195, {sd}, s88 offen offset:{16*rg}", "m")
    g.srd(SD_, 24, S * 2)
    g(f"v_lshlrev_b32 v203, 1, v49\nv_lshlrev_b32 v49, 3, v49\nv_add_u32 v49, {hx(WS_ST)}, v49")
    g.vmem(f"buffer_load_ushort v48, v203, {sd}, 0 offen", "m")
    g(f"""
s_lshl_b32 s89, s{sK}, 2
s_add_u32 s89, s89, s{sWAVE}
s_mul_i32 s89, s89, {16*3584}
s_mul_i32 s90, s{sX}, 7
s_lshr_b32 s90, s90, 1
s_lshl_b32 s90, s90, 7
s_add_u32 s89, s89, s90
v_lshrrev_b32 v203, 2, v1
v_mul_u32_u24 v203, 3584, v203
v_and_b32 v204, 3, v1
v_lshl_add_u32 v203, v204, 7, v203
""")
    g.vmem(f"buffer_load_dword v218, v203, s[{SW}:{SW+3}], s89 offen{g.nt('nt_pf')}", "m")

def conv_prep(g):
    g(f"""
s_lshr_b32 s62, s{sWAVE}, 1
s_mul_i32 s92, s62, {CH}
s_add_u32 s92, s92, {L_CV}
v_add_u32 v219, s92, v200
""")
    for q in range(2):
        b = 206 + 6 * q; o = 64 + 1024 * q
        g.lds(f"ds_write_b128 v219, {vr(b+2,4)} offset:{o}", "cw")
        for k in range(4): g(f"v_alignbit_b32 v{220+k}, v{b+2+k}, v{b+1+k}, 16")
        g.lds(f"ds_write_b128 v219, v[220:223] offset:{HC+o}", "cw")
        for k in range(4): g(f"v_mov_b32 v{224+k}, v{b+1+k}")
        g.lds(f"ds_write_b128 v219, v[224:227] offset:{2*HC+o}", "cw")
        for k in range(4): g(f"v_alignbit_b32 v{228+k}, v{b+1+k}, v{b+k}, 16")
        g.lds(f"ds_write_b128 v219, v[228:231] offset:{3*HC+o}", "cw")
    g(f"""
v_mov_b64 v[232:233], 0
v_mov_b64 v[234:235], 0
v_lshrrev_b32 v236, 2, v1
v_min_u32 v236, 4, v236
v_mul_u32_u24 v236, {HC}, v236
v_lshlrev_b32 v237, 4, v1
v_subrev_u32 v238, 256, v237
v_and_b32 v237, 48, v237
v_cmp_gt_u32 vcc, 16, v1
v_and_b32 v239, 15, v1
v_lshrrev_b32 v240, 4, v1
v_cndmask_b32 v237, v238, v237, vcc
v_add3_u32 v236, v236, v237, s92
s_mov_b64 exec, {hx(0xffffffff)}
s_mov_b32 exec_hi, 0xffff
""")
    g.lds("ds_write_b128 v236, v[232:235]", "cw")
    g(f"""
s_mov_b64 exec, -1
s_and_b32 s62, s{sWAVE}, 1
s_lshl_b32 s63, s62, 8
v_sub_u32 v241, 3, v239
v_and_b32 v241, 3, v241
v_add3_u32 v192, v239, v241, 9
v_lshlrev_b32 v242, 3, v240
v_sub_u32 v192, v192, v242
v_mul_u32_u24 v241, {HC}, v241
v_lshl_add_u32 v192, v192, 1, v241
s_add_u32 s64, s92, s63
v_add3_u32 v192, v192, s64, 64
v_lshlrev_b32 v193, 5, v239
v_lshl_add_u32 v193, v240, 4, v193
s_sub_u32 s64, s92, s63
s_add_u32 s64, s64, {4*HC+512-32}
v_add_u32 v193, s64, v193
v_lshlrev_b32 v194, 5, v239
v_and_b32 v242, 1, v240
v_lshl_add_u32 v194, v242, 9, v194
v_lshrrev_b32 v242, 1, v240
v_lshl_add_u32 v194, v242, 4, v194
s_lshl_b32 s63, s62, 11
s_add_u32 s69, s69, s63
s_add_u32 s69, s69, {hx(WS_ZT)}
v_lshrrev_b32 v242, 3, v239
s_lshl_b32 s62, s62, 3
v_add3_u32 v242, v242, s62, 2
v_cmp_eq_u32 vcc, v242, v240
v_and_b32 v243, 1, v239
v_lshlrev_b32 v244, 16, v205
v_cndmask_b32 v205, 0, v205, vcc
v_cndmask_b32 v244, 0, v244, vcc
v_cmp_eq_u32 vcc, 0, v243
v_bfe_u32 v245, v239, 1, 2
s_nop 0
v_cndmask_b32 v205, v205, v244, vcc
""")
    for k in range(4):
        g(f"v_cmp_eq_u32 vcc, {3-k}, v245\ns_nop 1\nv_cndmask_b32 v{196+k}, 0, v205, vcc")

def pollA(g, name):
    g(f"""
s_lshl_b32 s62, s{sWAVE}, 13
s_add_u32 s62, s62, {hx(WS_FA)}
v_lshlrev_b32 v4, 7, v1
v_add_u32 v4, s62, v4
s_lshr_b32 s62, s2, 5
s_lshl_b32 s62, s62, 7
s_add_u32 s62, s62, {hx(WS_FA)}
v_mul_u32_u24 v7, {7*128}, v6
v_add_u32 v7, s62, v7
""")
    poll(g, name, [4, 7])

def kv_dma(g):
    g(f"""
s_and_b32 s62, s{sWAVE}, 1
s_lshl_b32 s62, s62, 11
s_add_u32 s62, s62, s92
s_add_u32 m0, s62, {4*HC+512}
s_sub_u32 s63, s69, {hx(WS_ZT - WS_KVT)}
v_lshlrev_b32 v4, 4, v1
""")
    g.vmem(f"buffer_load_dwordx4 v4, s[{SWS}:{SWS+3}], s63 offen sc1 lds", "kv")
    g.vmem(f"buffer_load_dwordx4 v4, s[{SWS}:{SWS+3}], s63 offen offset:1024 sc1 lds", "kv")

HEADER = open("recurrent_scan__ssm_conv_h3__mixer_token_mlp__prompt.s.ref").read().split("; Override launch")[0]

def emit(cfg):
    body = build(cfg)
    return HEADER + f"""; @launch grid=(256,1,1) block=(256,1,1) lds={LDS_TOTAL}
.amdgcn_target "amdgcn-amd-amdhsa--gfx950"
.text
.globl {KNAME}
.p2align 8
.type {KNAME},@function
{KNAME}:
{body}  s_endpgm
.section .rodata,"a"
.p2align 6
.amdhsa_kernel {KNAME}
  .amdhsa_next_free_vgpr 512
  .amdhsa_next_free_sgpr 102
  .amdhsa_accum_offset 256
  .amdhsa_group_segment_fixed_size 0
  .amdhsa_kernarg_size 112
  .amdhsa_user_sgpr_count 2
  .amdhsa_user_sgpr_kernarg_segment_ptr 1
  .amdhsa_system_sgpr_workgroup_id_x 1
.end_amdhsa_kernel
"""

if __name__ == "__main__":
    out = sys.argv[1]
    cfg = {}
    for kv in sys.argv[2:]:
        k, v = kv.split("="); cfg[k] = int(v)
    open(out, "w").write(emit(cfg))
    print("wrote", out)
```

```python
import sys, math, struct

S, D, F = 2048, 448, 1792
WS_HF, WS_KVT, WS_ST, WS_UF, WS_ZT = 0x0, 0x200000, 0x400000, 0x500000, 0x800000
WS_FA, WS_FU, WS_FZ, WS_EP = 0xA00000, 0xA10000, 0xA20000, 0xA40000
WS_PROF = 0x1000000
WS_SIZE = 0x1100000
SZ_SD = S * D * 2
OOB = 0x80000000
KNAME = "recurrent_scan__ssm_conv_h3__mixer_token_mlp__prompt_kernel"

NR = 6
RW = NR * 2048
L_RED, L_RING = 0, 65536
L_LN, L_ST, L_KVX = 0, 7680, 8192
HC = 4160
CH = 4 * HC + 4608
L_CV = L_RING + 4 * RW
LDS_TOTAL = L_CV + 2 * CH

def f2u(x): return struct.unpack("<I", struct.pack("<f", x))[0]
def hx(x): return f"0x{x & 0xffffffff:x}"
def vr(b, n): return f"v[{b}:{b+n-1}]" if n > 1 else f"v{b}"
def ar(b, n): return f"a[{b}:{b+n-1}]"

class Gen:
    def __init__(self, cfg):
        self.l = []; self.cfg = cfg; self.vm = []; self.lg = []
        self.prof = bool(cfg.get("prof", 0)); self.nst = 0
    def __call__(self, s):
        for ln in s.strip("\n").split("\n"):
            ln = ln.strip()
            if ln: self.l.append(ln if ln.endswith(":") else "  " + ln)
    def text(self): return "\n".join(self.l) + "\n"
    def vmem(self, s, tag): self(s); self.vm.append(tag)
    def lds(self, s, tag): self(s); self.lg.append(tag)
    def _need(self, q, tag):
        if tag not in q: return None
        idx = len(q) - 1 - q[::-1].index(tag)
        n = len(q) - 1 - idx
        del q[:idx + 1]
        return n
    def wvm(self, tag):
        n = self._need(self.vm, tag)
        if n is not None: self(f"s_waitcnt vmcnt({min(n, 62)})")
    def wlg(self, tag):
        n = self._need(self.lg, tag)
        if n is not None: self(f"s_waitcnt lgkmcnt({min(n, 14)})")
    def wall(self, vm=True, lg=True):
        self("s_waitcnt " + " ".join(x for x, y in (("vmcnt(0)", vm), ("lgkmcnt(0)", lg)) if y))
        if vm: self.vm = []
        if lg: self.lg = []
    def srd(self, d, lo, nbytes):
        self(f"s_mov_b32 s{d}, s{lo}\ns_mov_b32 s{d+1}, s{lo+1}\ns_mov_b32 s{d+2}, {hx(nbytes)}\ns_mov_b32 s{d+3}, 0x20000")
    def stamp(self, i):
        if self.prof:
            self(f"s_memrealtime s[98:99]\ns_waitcnt lgkmcnt(0)\nv_writelane_b32 v254, s98, {i}"); self.lg = []
    def flag(self, k): return self.cfg.get(k, 0)
    def nt(self, k, default=1): return " nt" if self.cfg.get(k, default) else ""

SWS, SA, SB, SC, SD_, SW = 32, 36, 40, 44, 48, 52
sWAVE, sX, sK, sMASK = 56, 57, 58, 59
ACC, RNG = 64, 128
vTAG = 255

def allred2(g, va, vb, ta, tb):
    for m in ("quad_perm:[1,0,3,2]", "quad_perm:[2,3,0,1]", "row_half_mirror", "row_mirror"):
        g(f"s_nop 0\nv_add_f32_dpp v{va}, v{va}, v{va} {m} row_mask:0xf bank_mask:0xf\nv_add_f32_dpp v{vb}, v{vb}, v{vb} {m} row_mask:0xf bank_mask:0xf")
    g(f"v_mov_b32 v{ta}, v{va}\nv_mov_b32 v{tb}, v{vb}\ns_nop 0\nv_permlane16_swap_b32 v{ta}, v{va}\nv_permlane16_swap_b32 v{tb}, v{vb}\ns_nop 0")
    g(f"v_add_f32 v{va}, v{va}, v{ta}\nv_add_f32 v{vb}, v{vb}, v{tb}")

def poll(g, name, voffs):
    g(f"s_mov_b32 s60, 0\n{name}_P:")
    for i, v in enumerate(voffs):
        g(f"buffer_load_dword v{250+i}, v{v}, s[{SWS}:{SWS+3}], 0 offen sc1")
    g("s_add_u32 s60, s60, 1\ns_waitcnt vmcnt(0)")
    g(f"v_cmp_ne_u32 vcc, v{vTAG}, v250")
    for i in range(1, len(voffs)):
        g(f"v_cmp_ne_u32 s[62:63], v{vTAG}, v{250+i}\ns_or_b64 vcc, vcc, s[62:63]")
    if len(voffs) == 1: g("s_or_b64 vcc, vcc, vcc")
    g(f"s_cbranch_scc0 {name}_OK\ns_sleep 2\ns_cmp_lt_u32 s60, 0x8000\ns_cbranch_scc1 {name}_P\n{name}_OK:")
    g.vm = []

def gemm_addr(g, pitch, base):
    g(f"""
v_mul_u32_u24 v{base}, {pitch}, v2
v_lshl_add_u32 v{base}, v3, 4, v{base}
v_add_u32 v{base+1}, {8*pitch-1024}, v{base}
""")

class WPhase:
    def __init__(self, g, n, vdma, srd, soff, inc, tag):
        self.g, self.n, self.vd, self.srd, self.so, self.inc, self.tag = g, n, vdma, srd, soff, inc, tag
        self.issued = 0; self.read = 0
    def issue(self):
        g = self.g; i = self.issued
        if i >= self.n: return
        assert i < self.read + NR
        if i >= NR: g.wlg(f"{self.tag}r{i-NR}")
        g(f"s_add_u32 m0, s61, {(i % NR) * 2048}")
        g(f"s_add_u32 s{self.so}, s{self.so}, {self.inc}" if i else "s_nop 0")
        g.vmem(f"buffer_load_dwordx4 v{self.vd}, s[{self.srd}:{self.srd+3}], s{self.so} offen lds", f"{self.tag}d{i}")
        g.vmem(f"buffer_load_dwordx4 v{self.vd+1}, s[{self.srd}:{self.srd+3}], s{self.so} offen offset:1024 lds", f"{self.tag}d{i}")
        self.issued += 1
    def rd(self):
        g = self.g; i = self.read
        g.wvm(f"{self.tag}d{i}")
        for h in range(2):
            for e in range(2):
                g.lds(f"ds_read_b64_tr_b16 {ar(8*i+4*h+2*e, 2)}, v{13+h} offset:{(i % NR)*2048 + e*512}", f"{self.tag}r{i}")
        self.read += 1
    def run(self, upto):
        while self.read < upto:
            self.rd()
            if self.read >= 2 and self.issued < self.read + NR - 1: self.issue()
    def refill(self):
        while self.issued < min(self.n, self.read + NR): self.issue()

def s_phase(g, n, tr_is_A, soff, tail):
    def ld(i):
        r = RNG + 8 * (i % 8)
        if i: g(f"s_add_u32 s{soff}, s{soff}, {2*7168}")
        g.vmem(f"buffer_load_dwordx4 {vr(r,4)}, v12, s[{SWS}:{SWS+3}], s{soff} offen sc1", f"s{i}")
        g.vmem(f"buffer_load_dwordx4 {vr(r+4,4)}, v12, s[{SWS}:{SWS+3}], s{soff} offen offset:512 sc1", f"s{i}")
    for i in range(8): ld(i)
    yield
    for i in range(n):
        g.wvm(f"s{i}")
        r = RNG + 8 * (i % 8)
        for h in range(2):
            for b in range(2):
                q = ACC + 16 * (2 * h + b)
                t = ar(8 * i + 4 * h, 4); d = vr(r + 4 * b, 4)
                x, y = (t, d) if tr_is_A else (d, t)
                g(f"v_mfma_f32_32x32x16_bf16 {vr(q,16)}, {x}, {y}, {vr(q,16) if i else '0'}")
        if i + 8 < n: ld(i + 8)
        else: tail(i + 8 - n)

def reduce4(g):
    g(f"s_lshl_b32 s62, s{sWAVE}, 14\nv_lshlrev_b32 v15, 4, v1\nv_add_u32 v4, s62, v15\ns_lshl_b32 s62, s{sWAVE}, 12\nv_add_u32 v15, s62, v15\ns_nop 7")
    for q in range(4):
        for r in range(4):
            g.lds(f"ds_write_b128 v4, {vr(ACC+16*q+4*r,4)} offset:{L_RED + q*4096 + r*1024}", "rw")
    g.wall(vm=False)
    g("s_barrier")
    for w in range(3):
        for r in range(4):
            g.lds(f"ds_read_b128 {vr(ACC+16*w+4*r,4)}, v15 offset:{L_RED + w*16384 + r*1024}", f"rr{w}{r}")
    for r in range(4):
        g.wlg(f"rr1{r}")
        g.lds(f"ds_read_b128 {vr(ACC+48+4*r,4)}, v15 offset:{L_RED + 3*16384 + r*1024}", f"rr3{r}")
        for h in range(2):
            o = 4 * r + 2 * h
            g(f"v_pk_add_f32 {vr(16+o,2)}, {vr(ACC+o,2)}, {vr(ACC+16+o,2)}")
    for w in (2, 3):
        for r in range(4):
            g.wlg(f"rr{w}{r}")
            for h in range(2):
                o = 4 * r + 2 * h
                g(f"v_pk_add_f32 {vr(16+o,2)}, {vr(16+o,2)}, {vr(ACC+16*w+o,2)}")


def build(cfg):
    g = Gen(cfg)
    ws = f"s[{SWS}:{SWS+3}]"
    g(f"""
s_cmp_ge_u32 s2, 256
s_cbranch_scc1 L_END
s_load_dwordx16 s[4:19], s[0:1], 0
s_load_dwordx8 s[20:27], s[0:1], 64
s_load_dwordx2 s[28:29], s[0:1], 104
v_lshrrev_b32 v2, 6, v0
v_and_b32 v1, 63, v0
v_readfirstlane_b32 s{sWAVE}, v2
s_mov_b32 s{sMASK}, 0xffff0000
s_and_b32 s{sX}, s2, 7
s_lshr_b32 s{sK}, s2, 3
""")
    if g.prof: g("s_memrealtime s[98:99]")
    g(f"""
v_lshrrev_b32 v5, 5, v1
v_and_b32 v6, 31, v1
v_mov_b32 v7, {hx(WS_EP)}
s_cmp_ge_u32 s{sWAVE}, 2
s_cbranch_scc1 L_LN
""")
    g(f"""
s_mul_i32 s93, s2, 9363
s_lshr_b32 s93, s93, 16
s_mul_i32 s94, s93, 7
s_sub_u32 s94, s2, s94
v_lshrrev_b32 v2, 3, v1
v_and_b32 v3, 7, v1
s_lshl_b32 s64, s93, 3
v_add_u32 v64, s64, v2
s_lshl_b32 s65, s94, 4
s_lshl_b32 s66, s{sWAVE}, 3
s_add_u32 s65, s65, s66
v_add_u32 v65, s65, v3
v_mul_u32_u24 v66, 7168, v64
v_lshl_add_u32 v66, v65, 3, v66
v_add_u32 v67, 3584, v66
v_subrev_u32 v68, 2688, v66
v_mov_b32 v69, {hx(OOB)}
v_cmp_eq_u32 vcc, 0, v64
v_lshlrev_b32 v70, 5, v65
s_cmp_ge_u32 s2, 224
v_cndmask_b32 v68, v68, v69, vcc
s_waitcnt lgkmcnt(0)
""")
    if g.prof: g("v_mov_b32 v254, 0\nv_writelane_b32 v254, s98, 0")
    g.srd(SWS, 28, WS_SIZE)
    g.vmem(f"buffer_load_dword v{vTAG}, v7, {ws}, 0 offen sc1", "tag")
    g("s_cbranch_scc1 L_KVSKIP")
    g.srd(SA, 6, SZ_SD); g.srd(SB, 8, SZ_SD); g.srd(SC, 10, D * 8)
    sa, sb, sc_ = (f"s[{x}:{x+3}]" for x in (SA, SB, SC))
    g.vmem(f"buffer_load_dwordx4 v[72:75], v70, {sc_}, 0 offen", "sk")
    g.vmem(f"buffer_load_dwordx4 v[76:79], v70, {sc_}, 0 offen offset:16", "sk")
    KR, VR_ = 80, 102
    for j in range(3):
        g.vmem(f"buffer_load_dwordx2 {vr(KR+2*j,2)}, v68, {sa}, 0 offen offset:{896*j}{g.nt('nt_kv')}", "k")
    for j in range(8):
        g.vmem(f"buffer_load_dwordx2 {vr(KR+6+2*j,2)}, v{66 + j//4}, {sa}, 0 offen offset:{896*(j%4)}{g.nt('nt_kv')}", "k")
    for j in range(8):
        g.vmem(f"buffer_load_dwordx2 {vr(VR_+2*j,2)}, v{66 + j//4}, {sb}, 0 offen offset:{896*(j%4)}{g.nt('nt_kv')}", "v")
    g("L_KVSKIP:")
    g("s_barrier")
    nmisc = misc_loads(g)
    g("s_cmp_ge_u32 s2, 224\ns_cbranch_scc1 L_A1")
    g(f"""
s_lshl_b32 s66, s{sWAVE}, 12
s_add_u32 s66, s66, {L_KVX}
v_xor_b32 v71, v2, v3
v_lshlrev_b32 v71, 4, v71
v_lshl_add_u32 v71, v3, 9, v71
v_add_u32 v71, s66, v71
v_lshlrev_b32 v118, 4, v1
v_add_u32 v118, s66, v118
v_lshrrev_b32 v119, 5, v1
v_xor_b32 v119, v119, v3
s_lshl_b32 s64, s94, 6
s_lshl_b32 s66, s{sWAVE}, 5
s_add_u32 s64, s64, s66
s_lshl_b32 s64, s64, 12
s_lshl_b32 s66, s93, 7
s_add_u32 s64, s64, s66
s_add_u32 s64, s64, {hx(WS_KVT)}
""")
    for i in range(4):
        g(f"v_xor_b32 v{120+i}, {2*i}, v119\nv_lshlrev_b32 v{120+i}, 4, v{120+i}\nv_add_u32 v124, {8*i}, v2\nv_lshl_add_u32 v{120+i}, v124, 12, v{120+i}")
    g.wvm("sk")
    W = 128
    for p in range(2):
        a0, a1, b0, b1 = 72 + 4*p, 73 + 4*p, 74 + 4*p, 75 + 4*p
        o = W + 8 * p
        g(f"v_lshlrev_b32 v{o}, 16, v{a0}\nv_lshlrev_b32 v{o+1}, 16, v{b0}\nv_and_b32 v{o+2}, s{sMASK}, v{a0}\nv_and_b32 v{o+3}, s{sMASK}, v{b0}")
        g(f"v_lshlrev_b32 v{o+4}, 16, v{a1}\nv_lshlrev_b32 v{o+5}, 16, v{b1}\nv_and_b32 v{o+6}, s{sMASK}, v{a1}\nv_and_b32 v{o+7}, s{sMASK}, v{b1}")
    g.wvm("k")
    KU, O = 144, 16
    for p in range(2):
        for r in range(11):
            g(f"v_lshlrev_b32 v{KU+2*r}, 16, v{KR+2*r+p}\nv_and_b32 v{KU+2*r+1}, s{sMASK}, v{KR+2*r+p}")
        for t in range(4):
            for j in range(8):
                o = 220 + 16 * p + 2 * j; r = j + 3 - t
                if t == 0: g(f"v_pk_mul_f32 {vr(o,2)}, {vr(KU+2*r,2)}, {vr(W+8*p,2)}")
                else: g(f"v_pk_fma_f32 {vr(o,2)}, {vr(KU+2*r,2)}, {vr(W+8*p+2*t,2)}, {vr(o,2)}")
    g.wvm("v")
    for p in range(2):
        for j in range(8):
            g(f"v_lshlrev_b32 v{KU+2*j}, 16, v{VR_+2*j+p}\nv_and_b32 v{KU+2*j+1}, s{sMASK}, v{VR_+2*j+p}")
        for j in range(8):
            o = 220 + 16 * p + 2 * j
            g(f"v_pk_mul_f32 {vr(o,2)}, {vr(o,2)}, {vr(KU+2*j,2)}")
        for c in range(2):
            u = KR + 8 * p + 4 * c
            for m in range(4):
                g(f"v_cvt_pk_bf16_f32 v{u+m}, v{220+16*p+2*(7-2*m)+c}, v{220+16*p+2*(6-2*m)+c}")
            g.lds(f"ds_write_b128 v71, {vr(u,4)} offset:{(2*p+c)*128}", "kw")
    g.wlg("kw")
    for i in range(4):
        g.lds(f"ds_read_b128 {vr(KR+4*i,4)}, v118 offset:{i*1024}", f"kr{i}")
    for i in range(4):
        g.wlg(f"kr{i}")
        g.vmem(f"buffer_store_dwordx4 {vr(KR+4*i,4)}, v{120+i}, {ws}, s64 offen sc1", "kst")
    g("s_branch L_A1")
    g.vm = []; g.lg = []
    LP = 960
    g(f"""
L_LN:
s_sub_u32 s62, s{sWAVE}, 2
s_lshl_b32 s62, s62, 2
v_add_u32 v64, s62, v5
s_lshl_b32 s63, s2, 3
v_add_u32 v65, s63, v64
v_mul_u32_u24 v66, 896, v65
v_lshl_add_u32 v66, v6, 4, v66
v_cmp_gt_u32 vcc, 28, v6
v_mov_b32 v67, {hx(OOB)}
v_mul_u32_u24 v69, {LP}, v64
v_cndmask_b32 v66, v67, v66, vcc
v_cndmask_b32 v68, 0, 1.0, vcc
s_mov_b64 s[64:65], vcc
s_waitcnt lgkmcnt(0)
""")
    if g.prof: g("v_mov_b32 v254, 0\nv_writelane_b32 v254, s98, 0")
    g.srd(SWS, 28, WS_SIZE); g.srd(SA, 4, SZ_SD)
    g.vmem(f"buffer_load_dword v{vTAG}, v7, {ws}, 0 offen sc1", "tag")
    for p in range(2):
        g.vmem(f"buffer_load_dwordx4 {vr(72+8*p,4)}, v66, {sa}, 0 offen offset:{1792*p}{g.nt('nt_x')}", f"x{p}")
        g.vmem(f"buffer_load_dwordx4 {vr(76+8*p,4)}, v66, {sa}, 0 offen offset:{1792*p+448}{g.nt('nt_x')}", f"x{p}")
    g("s_barrier")
    misc_loads(g)
    g(f"v_lshl_add_u32 v69, v6, 4, v69\nv_lshlrev_b32 v70, 3, v64")
    U = [96, 128]; T = [112, 144]
    for p in range(2):
        g.wvm(f"x{p}")
        for i in range(8):
            g(f"v_lshlrev_b32 v{U[p]+2*i}, 16, v{72+8*p+i}\nv_and_b32 v{U[p]+2*i+1}, s{sMASK}, v{72+8*p+i}")
        u, t = U[p], T[p]
        g(f"v_pk_add_f32 {vr(t,2)}, {vr(u,2)}, {vr(u+2,2)}\nv_pk_add_f32 {vr(t+2,2)}, {vr(u+4,2)}, {vr(u+6,2)}")
        g(f"v_pk_add_f32 {vr(t+4,2)}, {vr(u+8,2)}, {vr(u+10,2)}\nv_pk_add_f32 {vr(t+6,2)}, {vr(u+12,2)}, {vr(u+14,2)}")
        g(f"v_pk_add_f32 {vr(t,2)}, {vr(t,2)}, {vr(t+2,2)}\nv_pk_add_f32 {vr(t+4,2)}, {vr(t+4,2)}, {vr(t+6,2)}")
        g(f"v_pk_add_f32 {vr(t,2)}, {vr(t,2)}, {vr(t+4,2)}\nv_add_f32 v{t}, v{t}, v{t+1}")
    allred2(g, T[0], T[1], T[0]+1, T[1]+1)
    for p in range(2):
        u, t = U[p], T[p]
        g(f"v_mul_f32 v{t}, {hx(f2u(1.0/D))}, v{t}")
        for i in range(8):
            g(f"v_pk_add_f32 {vr(u+2*i,2)}, {vr(u+2*i,2)}, {vr(t,2)} op_sel_hi:[1,0] neg_lo:[0,1] neg_hi:[0,1]")
        g(f"v_pk_mul_f32 {vr(t+2,2)}, {vr(u,2)}, {vr(u,2)}\nv_pk_mul_f32 {vr(t+4,2)}, {vr(u+2,2)}, {vr(u+2,2)}")
        for i in range(2, 8):
            r = t + 2 + 2 * (i % 2)
            g(f"v_pk_fma_f32 {vr(r,2)}, {vr(u+2*i,2)}, {vr(u+2*i,2)}, {vr(r,2)}")
        g(f"v_pk_add_f32 {vr(t+2,2)}, {vr(t+2,2)}, {vr(t+4,2)}\nv_add_f32 v{t+2}, v{t+2}, v{t+3}\nv_mul_f32 v{t+2}, v{t+2}, v68")
    allred2(g, T[0]+2, T[1]+2, T[0]+3, T[1]+3)
    eps = hx(f2u(1e-5))
    for ins in ("v_mul_f32 v{t2}, {c}, v{t2}", "v_add_f32 v{t3}, {eps}, v{t2}", "v_rsq_f32 v{t1}, v{t3}", "v_mul_f32 v{t4}, v{t1}, v{t1}",
                "v_fmaak_f32 v{t4}, v{t4}, v{t2}, {eps}", "v_rsq_f32 v{t4}, v{t4}", "v_mul_f32 v{t4}, v{t4}, v{t1}"):
        for p in range(2):
            t = T[p]; g(ins.format(t1=t+1, t2=t+2, t3=t+3, t4=t+4, c=hx(f2u(1.0/D)), eps=eps))
    for p in range(2):
        u, t = U[p], T[p]
        for i in range(8):
            g(f"v_pk_mul_f32 {vr(u+2*i,2)}, {vr(u+2*i,2)}, {vr(t+4,2)} op_sel_hi:[1,0]")
        for i in range(8):
            g(f"v_cvt_pk_bf16_f32 v{160+8*p+i}, v{u+2*i}, v{u+2*i+1}")
    g("s_mov_b64 exec, s[64:65]")
    for p in range(2):
        g(f"ds_write_b128 v69, {vr(160+8*p,4)} offset:{L_LN + 2*p*LP}\nds_write_b128 v69, {vr(164+8*p,4)} offset:{L_LN + 2*p*LP+448}")
    g(f"v_cmp_eq_u32 vcc, 0, v6\ns_and_b64 exec, exec, vcc")
    for p in range(2):
        g(f"ds_write_b64 v70, {vr(T[p],2)} offset:{L_ST + 16*p}")
    g("s_mov_b64 exec, -1")
    g.vm = []; g.lg = []
    g(f"""
L_A1:
v_bfe_u32 v64, v1, 2, 2
v_mul_u32_u24 v64, {LP}, v64
v_lshrrev_b32 v65, 4, v0
v_lshl_add_u32 v64, v65, 5, v64
v_and_b32 v65, 3, v1
v_lshl_add_u32 v64, v65, 3, v64
v_lshlrev_b32 v66, 4, v0
s_mul_i32 s62, s2, 7168
s_add_u32 s63, s62, 4096
v_lshlrev_b32 v67, 3, v1
s_lshl_b32 s64, s2, 6
s_add_u32 s64, s64, {hx(WS_ST)}
s_waitcnt lgkmcnt(0)
s_barrier
""")
    g.stamp(1)
    g(f"""
ds_read_b64_tr_b16 v[72:73], v64 offset:{L_LN}
ds_read_b64_tr_b16 v[74:75], v64 offset:{L_LN + 4*LP}
s_cmp_eq_u32 s{sWAVE}, 3
s_cbranch_scc1 L_A2
ds_read_b64_tr_b16 v[76:77], v64 offset:{L_LN + 512}
ds_read_b64_tr_b16 v[78:79], v64 offset:{L_LN + 4*LP + 512}
s_waitcnt lgkmcnt(0)
buffer_store_dwordx4 v[76:79], v66, {ws}, s63 offen sc1
s_branch L_A3
L_A2:
ds_read_b128 v[76:79], v66 offset:{L_ST - 3072}
s_waitcnt lgkmcnt(0)
s_mov_b64 exec, 15
v_lshlrev_b32 v67, 4, v1
buffer_store_dwordx4 v[76:79], v67, {ws}, s64 offen sc1
s_mov_b64 exec, -1
L_A3:
""")
    g.vmem(f"buffer_store_dwordx4 v[72:75], v66, {ws}, s62 offen sc1", "hst")
    g(f"""
v_lshrrev_b32 v2, 3, v1
v_and_b32 v3, 7, v1
v_lshrrev_b32 v4, 2, v1
v_and_b32 v4, 4, v4
v_xor_b32 v3, v3, v4
""")
    gemm_addr(g, 3584, 10); gemm_addr(g, 4096, 8)
    g(f"""
v_mul_u32_u24 v12, 7168, v5
v_lshl_add_u32 v12, v6, 4, v12
s_mul_i32 s61, s{sWAVE}, {RW}
s_add_u32 s61, s61, {L_RING}
v_bfe_u32 v7, v1, 2, 2
v_lshl_add_u32 v4, v5, 3, v7
v_lshlrev_b32 v13, 7, v4
v_bfe_u32 v4, v1, 4, 1
v_and_b32 v7, 2, v7
v_xor_b32 v4, v4, v7
v_lshl_add_u32 v13, v4, 5, v13
v_and_b32 v7, 3, v1
v_lshl_add_u32 v13, v7, 3, v13
v_add_u32 v13, s61, v13
v_xor_b32 v14, 64, v13
s_mul_i32 s67, s{sWAVE}, {448*4096}
s_lshl_b32 s62, s86, 7
s_add_u32 s67, s67, s62
""")
    g.srd(SD_, 22, S * F * 2)
    g(f"""
s_lshl_b32 s62, s2, 7
s_add_u32 s62, s62, {hx(WS_FA)}
v_mov_b32 v249, s62
s_cmp_lt_u32 s{sK}, s83
s_cbranch_scc0 L_NOG1
""")
    g(f"s_mul_i32 s66, s{sWAVE}, {512*3584}\ns_lshl_b32 s62, s84, 7\ns_add_u32 s66, s66, s62")
    W1 = WPhase(g, 32, 10, SW, 66, 16 * 3584, "w1")
    W1.refill()
    def flagA():
        g.wvm("hst")
        g(f"v_add_u32 v{vTAG}, 1, v{vTAG}\ns_barrier")
        g(f"s_cmp_lg_u32 s{sWAVE}, 0\ns_cbranch_scc1 {lab('FA')}\ns_mov_b64 exec, 1\nbuffer_store_dword v{vTAG}, v249, {ws}, 0 offen sc1\ns_mov_b64 exec, -1\n{lab('FA', True)}:")
    cnt = [0]
    def lab(p, last=False):
        if not last: cnt[0] += 1
        return f"L_{p}{cnt[0]}"
    flagA()
    g.vm.append("flag")
    g.vm.remove("flag")
    g.stamp(2)
    conv_prep(g)
    W1.run(32)
    g.stamp(3)
    pollA(g, "PA")
    g.stamp(4)
    kv_dma(g)
    g(f"s_mul_i32 s68, s{sWAVE}, {64*7168}\ns_lshl_b32 s62, s85, 10\ns_add_u32 s68, s68, s62")
    W2 = WPhase(g, 28, 8, SD_, 67, 16 * 4096, "w2")
    def tail1(j):
        if j < NR: W2.issue()
    sp = s_phase(g, 32, True, 68, tail1)
    next(sp)
    g.wall(vm=False)
    for _ in sp: pass
    g.stamp(5)
    reduce4(g)
    g.stamp(6)
    c = math.sqrt(2 / math.pi); l2e = math.log2(math.e)
    k0 = -2 * c * l2e; k1 = k0 * 0.044715
    g(f"""
s_mov_b32 s62, {hx(f2u(k1))}
v_mov_b32 v52, {hx(f2u(k0))}
s_lshr_b32 s63, s{sWAVE}, 1
s_lshl_b32 s64, s84, 3
s_lshl_b32 s63, s63, 2
s_add_u32 s64, s64, s63
s_mul_i32 s64, s64, 7168
s_lshl_b32 s63, s85, 10
s_add_u32 s64, s64, s63
s_and_b32 s63, s{sWAVE}, 1
s_lshl_b32 s63, s63, 9
s_add_u32 s64, s64, s63
s_add_u32 s64, s64, {hx(WS_UF)}
s_add_u32 s65, s64, {2*7168}
""")
    for rg in range(4):
        b = 32 + 2 * rg; u = 16 + 4 * rg
        g(f"v_lshlrev_b32 v56, 16, v{b}\nv_and_b32 v57, s{sMASK}, v{b}\nv_lshlrev_b32 v58, 16, v{b+1}\nv_and_b32 v59, s{sMASK}, v{b+1}")
        g(f"v_pk_add_f32 {vr(u,2)}, {vr(u,2)}, v[56:57]\nv_pk_add_f32 {vr(u+2,2)}, {vr(u+2,2)}, v[58:59]")
        g(f"v_pk_mul_f32 v[56:57], {vr(u,2)}, {vr(u,2)}\nv_pk_mul_f32 v[58:59], {vr(u+2,2)}, {vr(u+2,2)}")
        for r in range(4): g(f"v_fma_f32 v{56+r}, v{56+r}, s62, v52")
        g(f"v_pk_mul_f32 v[56:57], v[56:57], {vr(u,2)}\nv_pk_mul_f32 v[58:59], v[58:59], {vr(u+2,2)}")
        for r in range(4): g(f"v_exp_f32 v{56+r}, v{56+r}")
        for r in range(4): g(f"v_add_f32 v{56+r}, 1.0, v{56+r}")
        for r in range(4): g(f"v_rcp_f32 v{56+r}, v{56+r}")
        g("s_nop 0")
        g(f"v_pk_mul_f32 v[56:57], v[56:57], {vr(u,2)}\nv_pk_mul_f32 v[58:59], v[58:59], {vr(u+2,2)}")
        g(f"v_cvt_pk_bf16_f32 v{b}, v56, v57\nv_cvt_pk_bf16_f32 v{b+1}, v58, v59")
        if rg & 1:
            x = b - 2
            g(f"s_nop 1\nv_permlane32_swap_b32 v{x}, v{x+2}\nv_permlane32_swap_b32 v{x+1}, v{x+3}")
            g.vmem(f"buffer_store_dwordx4 {vr(x,4)}, v12, {ws}, s{64 + rg//2} offen sc1", "ust")
    g.stamp(7)
    g(f"s_lshl_b32 s62, s82, 7\ns_add_u32 s62, s62, {hx(WS_FU)}\nv_mov_b32 v249, s62")
    for i in range(NR): W2.rd()
    W2.refill()
    g.wvm("ust")
    g("s_barrier")
    g(f"s_cmp_lg_u32 s{sWAVE}, 0\ns_cbranch_scc1 L_MID\ns_mov_b64 exec, 1\nbuffer_store_dword v{vTAG}, v249, {ws}, 0 offen sc1\ns_mov_b64 exec, -1\ns_branch L_MID")
    mid_vm, mid_lg = list(g.vm), list(g.lg)
    g.vm = ["hst"]; g.lg = []
    g("L_NOG1:")
    flagA()
    g.stamp(2)
    g(f"s_cmp_ge_u32 s{sK}, 28\ns_cbranch_scc1 L_HELP")
    conv_prep(g)
    g.stamp(3)
    pollA(g, "PD")
    g.stamp(4)
    kv_dma(g)
    W2d = WPhase(g, 28, 8, SD_, 67, 16 * 4096, "w2")
    W2d.refill()
    for i in range(NR): W2d.rd()
    W2d.refill()
    g("s_barrier")
    assert g.vm == mid_vm and g.lg == mid_lg, (g.vm, mid_vm, g.lg, mid_lg)
    g("L_MID:")
    g.stamp(8)
    CA, CB = 96, 128
    def rdA(t):
        g.lds(f"ds_read_b64 {vr(CA+4*t,2)}, v192 offset:{512*t}", f"A{t}")
        g.lds(f"ds_read_b64 {vr(CA+4*t+2,2)}, v192 offset:{512*t+8}", f"A{t}")
    def rdB(u): g.lds(f"ds_read_b128 {vr(CB+4*u,4)}, v193 offset:{512*u}", f"B{u}")
    def mf(acc, x, y, c=None):
        g(f"v_mfma_f32_16x16x32_bf16 {vr(ACC+4*acc,4)}, {x}, {y}, {c if c is not None else vr(ACC+4*acc,4)}")
    for u in range(8): rdB(u)
    for t in range(7, 4, -1): rdA(t)
    for u in range(8):
        g.wlg(f"B{u}")
        mf(u, "v[196:199]", vr(CB + 4 * u, 4), "0")
        if u < 5: rdA(4 - u)
    for it in range(4):
        last = it == 3
        if not last: g("v_add_u32 v192, 64, v192\nv_subrev_u32 v193, 64, v193")
        for t in range(7, -1, -1):
            g.wlg(f"A{t}")
            for u in range(0, 8 - t):
                g.wlg(f"B{u}")
                mf(t + u, vr(CA + 4 * t, 4), vr(CB + 4 * u, 4))
                if t == 0 and not last: rdB(u)
            if not last: rdA(t)
        if not last:
            for i in range(NR): W2.rd()
            W2.refill()
    g.stamp(9)
    g(f"""
s_xor_b32 s62, s{sWAVE}, 1
s_lshl_b32 s62, s62, 14
v_lshlrev_b32 v15, 4, v1
v_add_u32 v4, s62, v15
s_lshl_b32 s62, s{sWAVE}, 14
v_add_u32 v15, s62, v15
s_bitcmp1_b32 s{sWAVE}, 0
s_nop 4
s_cbranch_scc1 L_ZX1
""")
    for r in range(4): g(f"ds_write_b128 v4, {vr(ACC+16+4*r,4)} offset:{L_RED + r*1024}")
    g("s_branch L_ZX2\nL_ZX1:")
    for r in range(4): g(f"ds_write_b128 v4, {vr(ACC+4*r,4)} offset:{L_RED + r*1024}")
    g("s_waitcnt lgkmcnt(0)")
    for r in range(0, 16, 2): g(f"v_mov_b64 {vr(ACC+r,2)}, {vr(ACC+16+r,2)}")
    g("L_ZX2:")
    g.wall(vm=False)
    g("s_barrier")
    for r in range(4): g.lds(f"ds_read_b128 {vr(ACC+16+4*r,4)}, v15 offset:{L_RED + r*1024}", f"zx{r}")
    for r in range(4):
        g.wlg(f"zx{r}")
        q = ACC + 4 * r
        g(f"v_pk_add_f32 {vr(q,2)}, {vr(q,2)}, {vr(q+16,2)}\nv_pk_add_f32 {vr(q+2,2)}, {vr(q+2,2)}, {vr(q+18,2)}")
        z = ACC + 32 + 2 * r
        g(f"v_cvt_pk_bf16_f32 v{z}, v{q}, v{q+1}\nv_cvt_pk_bf16_f32 v{z+1}, v{q+2}, v{q+3}")
        if r & 1:
            g(f"s_nop 1\nv_permlane16_swap_b32 v{z-2}, v{z}\nv_permlane16_swap_b32 v{z-1}, v{z+1}")
            g.vmem(f"buffer_store_dwordx4 {vr(z-2,4)}, v194, {ws}, s69 offen offset:{512*(r-1)} sc1", "zst")
    W2.run(28)
    g.stamp(10)
    g(f"""
s_mul_i32 s62, s{sWAVE}, 49
s_add_u32 s62, s62, s87
v_min_u32 v4, 6, v1
v_mul_u32_u24 v4, 7, v4
v_add_u32 v4, s62, v4
v_lshlrev_b32 v4, 7, v4
v_add_u32 v4, {hx(WS_FU)}, v4
""")
    poll(g, "PU", [4])
    g.stamp(11)
    g(f"""
s_lshl_b32 s62, s2, 2
s_add_u32 s62, s62, s{sWAVE}
s_lshl_b32 s62, s62, 7
s_add_u32 s62, s62, {hx(WS_FZ)}
v_mov_b32 v249, s62
s_mov_b64 exec, 1
buffer_store_dword v{vTAG}, v249, {ws}, 0 offen sc1
s_mov_b64 exec, -1
s_mul_i32 s68, s{sWAVE}, {56*7168}
s_lshl_b32 s62, s87, 10
s_add_u32 s68, s68, s62
s_add_u32 s68, s68, {hx(WS_UF)}
""")
    g(f"""
s_lshl_b32 s62, s87, 6
s_lshl_b32 s63, s{sWAVE}, 4
s_add_u32 s62, s62, s63
s_lshl_b32 s64, s62, 12
s_lshl_b32 s63, s86, 7
s_add_u32 s64, s64, s63
s_add_u32 s64, s64, {hx(WS_ZT)}
s_lshl_b32 s62, s62, 1
s_lshr_b32 s63, s86, 4
s_add_u32 s62, s62, s63
s_lshl_b32 s62, s62, 7
s_add_u32 s62, s62, {hx(WS_FZ)}
v_and_b32 v7, 15, v1
v_lshlrev_b32 v7, 8, v7
v_add_u32 v7, s62, v7
""")
    def tail2(j):
        if j == 0:
            g.vmem(f"buffer_load_dwordx2 v[50:51], v49, {ws}, 0 offen sc1", "st")
    sp = s_phase(g, 28, False, 68, tail2)
    next(sp)
    g.wall(vm=False)
    for _ in sp: pass
    g.stamp(12)
    poll(g, "PZ", [7])
    g("s_mov_b32 m0, s61\ns_nop 0")
    g(f"buffer_load_dwordx4 v8, {ws}, s64 offen sc1 lds\nbuffer_load_dwordx4 v9, {ws}, s64 offen offset:1024 sc1 lds")
    g.stamp(13)
    g.wall()
    reduce4(g)
    g.stamp(14)
    g.srd(SA, 26, SZ_SD)
    g(f"""
v_subrev_u32 v53, s61, v13
v_lshlrev_b32 v54, 9, v5
v_sub_u32 v53, v53, v54
s_lshr_b32 s62, s{sWAVE}, 1
s_lshl_b32 s62, s62, 6
v_xor_b32 v53, s62, v53
s_and_b32 s62, s{sWAVE}, 1
s_mul_i32 s62, s62, {2*RW}
s_add_u32 s62, s62, {L_RING}
v_add_u32 v53, s62, v53
""")
    for rg in range(4):
        g.lds(f"ds_read_b64_tr_b16 {vr(32+2*rg,2)}, v53 offset:{(rg>>1)*RW + (rg&1)*1024}", f"z{rg}")
    g(f"""
v_lshlrev_b32 v48, 16, v48
v_mul_f32 v50, v50, v51
s_mov_b32 s62, {hx(f2u(-l2e))}
v_lshlrev_b32 v4, 3, v5
v_add_u32 v195, v195, v4
""")
    for rg in range(4):
        u = 16 + 4 * rg; x = 40 + 2 * rg; z = 32 + 2 * rg
        g(f"v_pk_add_f32 {vr(u,2)}, {vr(u,2)}, v[48:49] op_sel_hi:[1,0]\nv_pk_add_f32 {vr(u+2,2)}, {vr(u+2,2)}, v[48:49] op_sel_hi:[1,0]")
        for r in range(4): g(f"v_mul_f32 v{56+r}, s62, v{u+r}")
        for r in range(4): g(f"v_exp_f32 v{56+r}, v{56+r}")
        g(f"v_lshlrev_b32 v60, 16, v{x}\nv_and_b32 v61, s{sMASK}, v{x}\nv_lshlrev_b32 v62, 16, v{x+1}\nv_and_b32 v63, s{sMASK}, v{x+1}")
        for r in range(4): g(f"v_add_f32 v{56+r}, 1.0, v{56+r}")
        for r in range(4): g(f"v_rcp_f32 v{56+r}, v{56+r}")
        g.wlg(f"z{rg}")
        g(f"v_lshlrev_b32 v64, 16, v{z}\nv_and_b32 v65, s{sMASK}, v{z}\nv_lshlrev_b32 v66, 16, v{z+1}\nv_and_b32 v67, s{sMASK}, v{z+1}")
        g(f"v_pk_mul_f32 {vr(u,2)}, {vr(u,2)}, v[56:57]\nv_pk_mul_f32 {vr(u+2,2)}, {vr(u+2,2)}, v[58:59]")
        for r in range(4): g(f"v_fma_f32 v{56+r}, v{60+r}, v51, -v50")
        g(f"v_pk_mul_f32 {vr(u,2)}, {vr(u,2)}, v[64:65]\nv_pk_mul_f32 {vr(u+2,2)}, {vr(u+2,2)}, v[66:67]")
        g(f"v_pk_fma_f32 {vr(u,2)}, {vr(u,2)}, v[56:57], v[60:61]\nv_pk_fma_f32 {vr(u+2,2)}, {vr(u+2,2)}, v[58:59], v[62:63]")
        g(f"v_cvt_pk_bf16_f32 v{68+2*rg}, v{u}, v{u+1}\nv_cvt_pk_bf16_f32 v{69+2*rg}, v{u+2}, v{u+3}")
        if rg & 1:
            y = 68 + 2 * (rg - 1)
            g(f"s_nop 1\nv_permlane32_swap_b32 v{y}, v{y+2}\nv_permlane32_swap_b32 v{y+1}, v{y+3}")
            g(f"buffer_store_dwordx4 {vr(y,4)}, v195, s[{SA}:{SA+3}], s88 offen offset:{16*(rg-1)}")
    g.stamp(15)
    g(f"""
s_or_b32 s62, s2, s{sWAVE}
s_cmp_lg_u32 s62, 0
s_cbranch_scc1 L_FIN
v_mov_b32 v7, {hx(WS_EP)}
s_mov_b64 exec, 1
buffer_store_dword v{vTAG}, v7, {ws}, 0 offen sc1
s_branch L_FIN
""")
    g(f"""
L_HELP:
s_sub_u32 s62, s{sK}, 28
s_lshl_b32 s62, s62, 16
s_mul_i32 s63, s{sWAVE}, {448*4096}
s_add_u32 s62, s62, s63
s_lshl_b32 s63, s{sX}, 9
s_add_u32 s62, s62, s63
v_lshrrev_b32 v2, 2, v1
v_lshlrev_b32 v2, 12, v2
v_and_b32 v3, 3, v1
v_lshl_add_u32 v2, v3, 7, v2
""")
    for i in range(7):
        g(f"buffer_load_dword v{64+i}, v2, s[{SD_}:{SD_+3}], s62 offen{g.nt('nt_pf')}\ns_add_u32 s62, s62, {4*16*4096}")
    g("L_FIN:")
    if g.prof:
        g("s_waitcnt vmcnt(0)"); g.stamp(16)
        g(f"s_mov_b64 exec, 0xffffffff\ns_mov_b32 exec_hi, 0\ns_lshl_b32 s62, s2, 2\ns_add_u32 s62, s62, s{sWAVE}\ns_lshl_b32 s62, s62, 7\ns_add_u32 s62, s62, {hx(WS_PROF)}\nv_lshlrev_b32 v7, 2, v1")
        g(f"buffer_store_dword v254, v7, {ws}, s62 offen")
    g("L_END:")
    return g.text()

def misc_loads(g):
    g(f"""
s_and_b32 s62, s{sX}, 1
s_sub_u32 s83, 25, s62
s_mul_i32 s82, s{sX}, 49
s_add_u32 s82, s82, 1
s_lshr_b32 s82, s82, 1
s_add_u32 s82, s82, s{sK}
s_mul_i32 s84, s82, 9363
s_lshr_b32 s84, s84, 16
s_mul_i32 s85, s84, 7
s_sub_u32 s85, s82, s85
s_mul_i32 s86, s{sK}, 9363
s_lshr_b32 s86, s86, 16
s_mul_i32 s87, s86, 7
s_sub_u32 s87, s{sK}, s87
s_lshl_b32 s89, s{sX}, 2
s_add_u32 s86, s86, s89
""")
    g.srd(SW, 18, S * F * 2)
    g.srd(SD_, 12, SZ_SD)
    sd = f"s[{SD_}:{SD_+3}]"
    g(f"""
s_lshr_b32 s89, s{sWAVE}, 1
s_lshl_b32 s90, s2, 1
s_add_u32 s90, s90, s89
s_lshl_b32 s69, s90, 12
s_min_u32 s91, s69, {SZ_SD}
s_and_b32 s89, s{sWAVE}, 1
s_lshl_b32 s89, s89, 11
v_lshlrev_b32 v200, 4, v1
v_add_u32 v200, s89, v200
v_add_u32 v201, 1016, v200
v_subrev_u32 v202, 8, v200
v_mov_b32 v203, {hx(OOB)}
v_cmp_eq_u32 vcc, 0, v200
s_lshl_b32 s90, s90, 1
v_mov_b32 v204, s90
v_cndmask_b32 v202, v202, v203, vcc
""")
    nth = g.nt('nt_h')
    g.vmem(f"buffer_load_dwordx2 v[206:207], v202, {sd}, s91 offen{nth}", "m")
    g.vmem(f"buffer_load_dwordx4 v[208:211], v200, {sd}, s91 offen{nth}", "m")
    g.vmem(f"buffer_load_dwordx2 v[212:213], v201, {sd}, s91 offen{nth}", "m")
    g.vmem(f"buffer_load_dwordx4 v[214:217], v200, {sd}, s91 offen offset:1024{nth}", "m")
    g.srd(SD_, 14, D * 2)
    g.vmem(f"buffer_load_ushort v205, v204, {sd}, 0 offen", "m")
    g.srd(SD_, 20, F * 2)
    g(f"s_lshl_b32 s89, s84, 7\ns_lshr_b32 s90, s{sWAVE}, 1\ns_lshl_b32 s90, s90, 6\ns_add_u32 s89, s89, s90\ns_min_u32 s89, s89, {F*2}\nv_lshlrev_b32 v203, 3, v5")
    for rg in range(4):
        g.vmem(f"buffer_load_dwordx2 {vr(32+2*rg,2)}, v203, {sd}, s89 offen offset:{16*rg}", "m")
    g.srd(SD_, 4, SZ_SD)
    g(f"""
s_lshl_b32 s89, s86, 6
s_lshr_b32 s90, s90, 1
s_add_u32 s89, s89, s90
v_add_u32 v49, s89, v6
v_mul_u32_u24 v195, 896, v49
v_add_u32 v195, v195, v203
s_lshl_b32 s88, s87, 7
s_and_b32 s90, s{sWAVE}, 1
s_lshl_b32 s90, s90, 6
s_add_u32 s88, s88, s90
""")
    for rg in range(4):
        g.vmem(f"buffer_load_dwordx2 {vr(40+2*rg,2)}, v195, {sd}, s88 offen offset:{16*rg}", "m")
    g.srd(SD_, 24, S * 2)
    g(f"v_lshlrev_b32 v203, 1, v49\nv_lshlrev_b32 v49, 3, v49\nv_add_u32 v49, {hx(WS_ST)}, v49")
    g.vmem(f"buffer_load_ushort v48, v203, {sd}, 0 offen", "m")
    g(f"""
s_lshl_b32 s89, s{sK}, 2
s_add_u32 s89, s89, s{sWAVE}
s_mul_i32 s89, s89, {16*3584}
s_mul_i32 s90, s{sX}, 7
s_lshr_b32 s90, s90, 1
s_lshl_b32 s90, s90, 7
s_add_u32 s89, s89, s90
v_lshrrev_b32 v203, 2, v1
v_mul_u32_u24 v203, 3584, v203
v_and_b32 v204, 3, v1
v_lshl_add_u32 v203, v204, 7, v203
""")
    g.vmem(f"buffer_load_dword v218, v203, s[{SW}:{SW+3}], s89 offen{g.nt('nt_pf')}", "m")

def conv_prep(g):
    g(f"""
s_lshr_b32 s62, s{sWAVE}, 1
s_mul_i32 s92, s62, {CH}
s_add_u32 s92, s92, {L_CV}
v_add_u32 v219, s92, v200
""")
    for q in range(2):
        b = 206 + 6 * q; o = 64 + 1024 * q
        g.lds(f"ds_write_b128 v219, {vr(b+2,4)} offset:{o}", "cw")
        for k in range(4): g(f"v_alignbit_b32 v{220+k}, v{b+2+k}, v{b+1+k}, 16")
        g.lds(f"ds_write_b128 v219, v[220:223] offset:{HC+o}", "cw")
        for k in range(4): g(f"v_mov_b32 v{224+k}, v{b+1+k}")
        g.lds(f"ds_write_b128 v219, v[224:227] offset:{2*HC+o}", "cw")
        for k in range(4): g(f"v_alignbit_b32 v{228+k}, v{b+1+k}, v{b+k}, 16")
        g.lds(f"ds_write_b128 v219, v[228:231] offset:{3*HC+o}", "cw")
    g(f"""
v_mov_b64 v[232:233], 0
v_mov_b64 v[234:235], 0
v_lshrrev_b32 v236, 2, v1
v_min_u32 v236, 4, v236
v_mul_u32_u24 v236, {HC}, v236
v_lshlrev_b32 v237, 4, v1
v_subrev_u32 v238, 256, v237
v_and_b32 v237, 48, v237
v_cmp_gt_u32 vcc, 16, v1
v_and_b32 v239, 15, v1
v_lshrrev_b32 v240, 4, v1
v_cndmask_b32 v237, v238, v237, vcc
v_add3_u32 v236, v236, v237, s92
s_mov_b64 exec, {hx(0xffffffff)}
s_mov_b32 exec_hi, 0xffff
""")
    g.lds("ds_write_b128 v236, v[232:235]", "cw")
    g(f"""
s_mov_b64 exec, -1
s_and_b32 s62, s{sWAVE}, 1
s_lshl_b32 s63, s62, 8
v_sub_u32 v241, 3, v239
v_and_b32 v241, 3, v241
v_add3_u32 v192, v239, v241, 9
v_lshlrev_b32 v242, 3, v240
v_sub_u32 v192, v192, v242
v_mul_u32_u24 v241, {HC}, v241
v_lshl_add_u32 v192, v192, 1, v241
s_add_u32 s64, s92, s63
v_add3_u32 v192, v192, s64, 64
v_lshlrev_b32 v193, 5, v239
v_lshl_add_u32 v193, v240, 4, v193
s_sub_u32 s64, s92, s63
s_add_u32 s64, s64, {4*HC+512-32}
v_add_u32 v193, s64, v193
v_lshlrev_b32 v194, 5, v239
v_and_b32 v242, 1, v240
v_lshl_add_u32 v194, v242, 9, v194
v_lshrrev_b32 v242, 1, v240
v_lshl_add_u32 v194, v242, 4, v194
s_lshl_b32 s63, s62, 11
s_add_u32 s69, s69, s63
s_add_u32 s69, s69, {hx(WS_ZT)}
v_lshrrev_b32 v242, 3, v239
s_lshl_b32 s62, s62, 3
v_add3_u32 v242, v242, s62, 2
v_cmp_eq_u32 vcc, v242, v240
v_and_b32 v243, 1, v239
v_lshlrev_b32 v244, 16, v205
v_cndmask_b32 v205, 0, v205, vcc
v_cndmask_b32 v244, 0, v244, vcc
v_cmp_eq_u32 vcc, 0, v243
v_bfe_u32 v245, v239, 1, 2
s_nop 0
v_cndmask_b32 v205, v205, v244, vcc
""")
    for k in range(4):
        g(f"v_cmp_eq_u32 vcc, {3-k}, v245\ns_nop 1\nv_cndmask_b32 v{196+k}, 0, v205, vcc")

def pollA(g, name):
    g(f"""
s_lshl_b32 s62, s{sWAVE}, 13
s_add_u32 s62, s62, {hx(WS_FA)}
v_lshlrev_b32 v4, 7, v1
v_add_u32 v4, s62, v4
s_lshr_b32 s62, s2, 5
s_lshl_b32 s62, s62, 7
s_add_u32 s62, s62, {hx(WS_FA)}
v_mul_u32_u24 v7, {7*128}, v6
v_add_u32 v7, s62, v7
""")
    poll(g, name, [4, 7])

def kv_dma(g):
    g(f"""
s_and_b32 s62, s{sWAVE}, 1
s_lshl_b32 s62, s62, 11
s_add_u32 s62, s62, s92
s_add_u32 m0, s62, {4*HC+512}
s_sub_u32 s63, s69, {hx(WS_ZT - WS_KVT)}
v_lshlrev_b32 v4, 4, v1
""")
    g.vmem(f"buffer_load_dwordx4 v4, s[{SWS}:{SWS+3}], s63 offen sc1 lds", "kv")
    g.vmem(f"buffer_load_dwordx4 v4, s[{SWS}:{SWS+3}], s63 offen offset:1024 sc1 lds", "kv")

HEADER = open("recurrent_scan__ssm_conv_h3__mixer_token_mlp__prompt.s.ref").read().split("; Override launch")[0]

def spin_kernel(j, M=10):
    t = "s_cmp_lg_u32 s2, 0\ns_cbranch_scc1 SP_END\ns_load_dwordx2 s[4:5], s[0:1], 104\nv_lshlrev_b32 v1, 7, v0\ns_waitcnt lgkmcnt(0)\n"
    t += f"s_add_u32 s8, s4, {hx(WS_PROF)}\ns_addc_u32 s9, s5, 0\ns_mov_b32 s10, 0x40000\ns_mov_b32 s11, 0x20000\n"
    for i in range(16):
        t += f"s_mov_b32 s3, {i*8192}\nbuffer_load_dword v{10+i}, v1, s[8:11], s3 offen\nbuffer_load_dword v{30+i}, v1, s[8:11], s3 offen offset:{4*j}\n"
    t += "s_waitcnt vmcnt(0)\n"
    for i in range(1, 16): t += f"v_min_u32 v10, v10, v{10+i}\nv_max_u32 v30, v30, v{30+i}\n"
    t += "s_mov_b32 s30, -1\ns_mov_b32 s31, 0\ns_mov_b32 s3, 0\nSP_R:\ns_nop 4\nv_readlane_b32 s6, v10, s3\nv_readlane_b32 s7, v30, s3\ns_nop 4\n"
    t += "s_min_u32 s30, s30, s6\ns_max_u32 s31, s31, s7\ns_add_u32 s3, s3, 1\ns_cmp_lt_u32 s3, 64\ns_cbranch_scc1 SP_R\n"
    t += f"s_memrealtime s[20:21]\ns_waitcnt lgkmcnt(0)\ns_sub_u32 s22, s31, s30\ns_min_u32 s22, s22, 5000\ns_mul_i32 s22, s22, {M}\n"
    t += "SP_L:\ns_memrealtime s[24:25]\ns_waitcnt lgkmcnt(0)\ns_sub_u32 s24, s24, s20\ns_cmp_lt_u32 s24, s22\ns_cbranch_scc1 SP_L\nSP_END:\n"
    return f""".text
.globl spin_kernel
.p2align 8
.type spin_kernel,@function
spin_kernel:
{t}  s_endpgm
.section .rodata,"a"
.p2align 6
.amdhsa_kernel spin_kernel
  .amdhsa_next_free_vgpr 64
  .amdhsa_next_free_sgpr 102
  .amdhsa_accum_offset 64
  .amdhsa_group_segment_fixed_size 0
  .amdhsa_kernarg_size 112
  .amdhsa_user_sgpr_count 2
  .amdhsa_user_sgpr_kernarg_segment_ptr 1
  .amdhsa_system_sgpr_workgroup_id_x 1
.end_amdhsa_kernel
"""

def emit(cfg):
    if "spin" in cfg:
        cfg["prof"] = 1
        t = emit1(cfg).replace("; @launch grid", f"; @launch kernel={KNAME} grid")
        t = t.replace(".amdgcn_target", "; @launch kernel=spin_kernel grid=(1,1,1) block=(64,1,1) lds=0\n.amdgcn_target")
        return t + spin_kernel(cfg["spin"])
    return emit1(cfg)

def emit1(cfg):
    body = build(cfg)
    return HEADER + f"""; @launch grid=(256,1,1) block=(256,1,1) lds={LDS_TOTAL}
.amdgcn_target "amdgcn-amd-amdhsa--gfx950"
.text
.globl {KNAME}
.p2align 8
.type {KNAME},@function
{KNAME}:
{body}  s_endpgm
.section .rodata,"a"
.p2align 6
.amdhsa_kernel {KNAME}
  .amdhsa_next_free_vgpr 512
  .amdhsa_next_free_sgpr 102
  .amdhsa_accum_offset 256
  .amdhsa_group_segment_fixed_size 0
  .amdhsa_kernarg_size 112
  .amdhsa_user_sgpr_count 2
  .amdhsa_user_sgpr_kernarg_segment_ptr 1
  .amdhsa_system_sgpr_workgroup_id_x 1
.end_amdhsa_kernel
"""

if __name__ == "__main__":
    out = sys.argv[1]
    cfg = {}
    for kv in sys.argv[2:]:
        k, v = kv.split("="); cfg[k] = int(v)
    open(out, "w").write(emit(cfg))
    print("wrote", out)
```

```python
import sys, math, struct

S, D, F = 2048, 448, 1792
WS_HF, WS_KVT, WS_ST, WS_UF, WS_ZT = 0x0, 0x200000, 0x400000, 0x500000, 0x800000
WS_FA, WS_FU, WS_FZ, WS_EP = 0xA00000, 0xA10000, 0xA40000, 0xA60000
WS_PROF = 0x1000000
WS_SIZE = 0x1100000
SZ_SD = S * D * 2
OOB = 0x80000000
KNAME = "recurrent_scan__ssm_conv_h3__mixer_token_mlp__prompt_kernel"

NR = 6
RW = NR * 2048
L_RED, L_RING = 0, 65536
L_LN, L_ST, L_KVX = 0, 7680, 8192
LP = 960
HC = 4160
CH = 4 * HC + 4608
L_CV = L_RING + 4 * RW
LDS_TOTAL = L_CV + 2 * CH

def f2u(x): return struct.unpack("<I", struct.pack("<f", x))[0]
def hx(x): return f"0x{x & 0xffffffff:x}"
def vr(b, n): return f"v[{b}:{b+n-1}]" if n > 1 else f"v{b}"
def ar(b, n): return f"a[{b}:{b+n-1}]"
def sr(b): return f"s[{b}:{b+3}]"

class Gen:
    def __init__(self, cfg):
        self.l = []; self.cfg = cfg; self.vm = []; self.lg = []
        self.prof = bool(cfg.get("prof", 0)); self.nlab = 0
    def __call__(self, s):
        for ln in s.strip("\n").split("\n"):
            ln = ln.strip()
            if ln: self.l.append(ln if ln.endswith(":") else "  " + ln)
    def text(self): return "\n".join(self.l) + "\n"
    def lab(self, p): self.nlab += 1; return f"L_{p}{self.nlab}"
    def vmem(self, s, tag): self(s); self.vm.append(tag)
    def lds(self, s, tag): self(s); self.lg.append(tag)
    def _need(self, q, tag):
        if tag not in q: return None
        idx = len(q) - 1 - q[::-1].index(tag)
        n = len(q) - 1 - idx
        del q[:idx + 1]
        return n
    def wvm(self, tag):
        n = self._need(self.vm, tag)
        if n is not None: self(f"s_waitcnt vmcnt({min(n, 62)})")
    def wlg(self, tag):
        n = self._need(self.lg, tag)
        if n is not None: self(f"s_waitcnt lgkmcnt({min(n, 14)})")
    def wall(self, vm=True, lg=True):
        self("s_waitcnt " + " ".join(x for x, y in (("vmcnt(0)", vm), ("lgkmcnt(0)", lg)) if y))
        if vm: self.vm = []
        if lg: self.lg = []
    def srd(self, d, lo, nbytes):
        self(f"s_mov_b32 s{d}, s{lo}\ns_mov_b32 s{d+1}, s{lo+1}\ns_mov_b32 s{d+2}, {hx(nbytes)}\ns_mov_b32 s{d+3}, 0x20000")
    def stamp(self, i):
        if self.prof:
            self(f"s_memrealtime s[98:99]\ns_waitcnt lgkmcnt(0)\nv_writelane_b32 v254, s98, {i}"); self.lg = []
    def opt(self, k, d=0): return self.cfg.get(k, d)

SWS, SA, SB, SC, SW2, SW1 = 32, 36, 40, 44, 48, 52
sWAVE, sX, sK, sMASK = 56, 57, 58, 59
sRING = 61
sT1, sCNT, sFT, sDT1, sST, sDT2, sOUT = 82, 83, 84, 85, 86, 87, 88
sZ, sCV = 69, 92
ACC, RNG = 64, 128
vTAG = 255
WS = sr(SWS)

def allred2(g, va, vb, ta, tb):
    for m in ("quad_perm:[1,0,3,2]", "quad_perm:[2,3,0,1]", "row_half_mirror", "row_mirror"):
        g(f"s_nop 0\nv_add_f32_dpp v{va}, v{va}, v{va} {m} row_mask:0xf bank_mask:0xf\nv_add_f32_dpp v{vb}, v{vb}, v{vb} {m} row_mask:0xf bank_mask:0xf")
    g(f"v_mov_b32 v{ta}, v{va}\nv_mov_b32 v{tb}, v{vb}\ns_nop 0\nv_permlane16_swap_b32 v{ta}, v{va}\nv_permlane16_swap_b32 v{tb}, v{vb}\ns_nop 0")
    g(f"v_add_f32 v{va}, v{va}, v{ta}\nv_add_f32 v{vb}, v{vb}, v{tb}")

def poll_issue(g, voffs, tag):
    for i, v in enumerate(voffs):
        g.vmem(f"buffer_load_dword v{250+i}, v{v}, {WS}, 0 offen sc1", tag)
def poll_check(g, voffs, tag):
    name = g.lab("P")
    g.wvm(tag)
    g(f"s_mov_b32 s60, 0\ns_branch {name}_C\n{name}_L:\ns_sleep 1")
    for i, v in enumerate(voffs):
        g(f"buffer_load_dword v{250+i}, v{v}, {WS}, 0 offen sc1")
    g(f"s_waitcnt vmcnt(0)\n{name}_C:\nv_cmp_ne_u32 vcc, v{vTAG}, v250")
    for i in range(1, len(voffs)):
        g(f"v_cmp_ne_u32 s[62:63], v{vTAG}, v{250+i}\ns_or_b64 vcc, vcc, s[62:63]")
    if len(voffs) == 1: g("s_or_b64 vcc, vcc, vcc")
    g(f"s_cbranch_scc0 {name}_OK\ns_add_u32 s60, s60, 1\ns_cmp_lt_u32 s60, 0x8000\ns_cbranch_scc1 {name}_L\n{name}_OK:")

def flag_store(g, sline):
    g(f"v_mov_b32 v249, s{sline}\ns_mov_b64 exec, 1\nbuffer_store_dword v{vTAG}, v249, {WS}, 0 offen sc1\ns_mov_b64 exec, -1")

class WPhase:
    def __init__(self, g, n, vdma, srd, soff, inc, tag, wrap=None):
        self.g, self.n, self.vd, self.srd, self.so, self.inc, self.tag, self.wrap = g, n, vdma, srd, soff, inc, tag, wrap
        self.issued = 0; self.read = 0
    def issue(self):
        g = self.g; i = self.issued
        if i >= self.n: return
        assert i < self.read + NR
        if i >= NR: g.wlg(f"{self.tag}r{i-NR}")
        g(f"s_add_u32 m0, s{sRING}, {(i % NR) * 2048}")
        g(f"s_add_u32 s{self.so}, s{self.so}, {self.inc}" if i else "s_nop 0")
        if i and self.wrap: g(f"s_cmp_eq_u32 s{self.so}, s{self.wrap[1]}\ns_cselect_b32 s{self.so}, s{self.wrap[0]}, s{self.so}")
        g.vmem(f"buffer_load_dwordx4 v{self.vd}, {sr(self.srd)}, s{self.so} offen lds", f"{self.tag}d{i}")
        g.vmem(f"buffer_load_dwordx4 v{self.vd+1}, {sr(self.srd)}, s{self.so} offen offset:1024 lds", f"{self.tag}d{i}")
        self.issued += 1
    def rd(self):
        g = self.g; i = self.read
        if i >= self.n: return
        g.wvm(f"{self.tag}d{i}")
        for h in range(2):
            for e in range(2):
                g.lds(f"ds_read_b64_tr_b16 {ar(8*i+4*h+2*e, 2)}, v{13+h} offset:{(i % NR)*2048 + e*512}", f"{self.tag}r{i}")
        self.read += 1
    def step(self):
        self.rd()
        if self.read >= 2 and self.issued < self.read + NR - 1: self.issue()
    def fill(self):
        while self.issued < min(self.n, self.read + NR): self.issue()

def s_phase(g, n, tr_is_A, soff, tail, wrap=None, head=None):
    def ld(i):
        r = RNG + 8 * (i % 8)
        if i:
            g(f"s_add_u32 s{soff}, s{soff}, {2*7168}")
            if wrap: g(f"s_cmp_eq_u32 s{soff}, s{wrap[1]}\ns_cselect_b32 s{soff}, s{wrap[0]}, s{soff}")
        g.vmem(f"buffer_load_dwordx4 {vr(r,4)}, v16, {WS}, s{soff} offen sc1", f"s{i}")
        g.vmem(f"buffer_load_dwordx4 {vr(r+4,4)}, v17, {WS}, s{soff} offen sc1", f"s{i}")
    for i in range(8): ld(i)
    if head: head()
    g.wall(vm=False)
    for i in range(n):
        g.wvm(f"s{i}")
        r = RNG + 8 * (i % 8)
        for h in range(2):
            for b in range(2):
                q = ACC + 16 * (2 * h + b)
                t = ar(8 * i + 4 * h, 4); d = vr(r + 4 * b, 4)
                x, y = (t, d) if tr_is_A else (d, t)
                g(f"v_mfma_f32_32x32x16_bf16 {vr(q,16)}, {x}, {y}, {vr(q,16) if i else '0'}")
        if i + 8 < n: ld(i + 8)
        tail(i + 8 - n)

def reduce4(g, pre_barrier=None, tick=None):
    for q in (1, 2, 3):
        for r in range(4):
            g.lds(f"ds_write_b128 v{17+q}, {vr(ACC+16*q+4*r,4)} offset:{r*1024}", "rw")
    if pre_barrier: pre_barrier()
    g.wall(vm=False)
    g("s_barrier")
    for r in range(4):
        for q in (1, 2, 3):
            g.lds(f"ds_read_b128 {vr(ACC+16*q+4*r,4)}, v15 offset:{q*4096 + r*1024}", f"rr{q}{r}")
    if tick: tick()
    for r in range(4):
        for q in (1, 2, 3):
            g.wlg(f"rr{q}{r}")
            for h in range(2):
                o = 4 * r + 2 * h
                g(f"v_pk_add_f32 {vr(ACC+o,2)}, {vr(ACC+o,2)}, {vr(ACC+16*q+o,2)}")

def setup(g):
    g(f"""
s_and_b32 s62, s{sX}, 1
s_sub_u32 s{sCNT}, 25, s62
s_mul_i32 s{sT1}, s{sX}, 49
s_add_u32 s{sT1}, s{sT1}, 1
s_lshr_b32 s{sT1}, s{sT1}, 1
s_add_u32 s{sT1}, s{sT1}, s{sK}
s_mul_i32 s{sFT}, s{sT1}, 9363
s_lshr_b32 s{sFT}, s{sFT}, 16
s_mul_i32 s{sDT1}, s{sFT}, 7
s_sub_u32 s{sDT1}, s{sT1}, s{sDT1}
v_lshrrev_b32 v2, 3, v1
v_and_b32 v3, 7, v1
v_lshrrev_b32 v4, 2, v1
v_and_b32 v4, 4, v4
v_xor_b32 v3, v3, v4
v_mul_u32_u24 v10, 3584, v2
v_lshl_add_u32 v10, v3, 4, v10
v_add_u32 v11, {8*3584-1024}, v10
s_mul_i32 s{sRING}, s{sWAVE}, {RW}
s_add_u32 s{sRING}, s{sRING}, {L_RING}
s_lshr_b32 s89, s{sWAVE}, 1
s_lshl_b32 s90, s2, 1
s_add_u32 s90, s90, s89
s_lshl_b32 s{sZ}, s90, 12
s_min_u32 s91, s{sZ}, {SZ_SD}
s_and_b32 s89, s{sWAVE}, 1
s_lshl_b32 s89, s89, 11
v_lshlrev_b32 v200, 4, v1
v_add_u32 v200, s89, v200
v_add_u32 v201, 1016, v200
v_subrev_u32 v202, 8, v200
v_mov_b32 v203, {hx(OOB)}
v_cmp_eq_u32 vcc, 0, v200
s_lshl_b32 s90, s90, 1
v_mov_b32 v204, s90
v_cndmask_b32 v202, v202, v203, vcc
""")
    g.srd(SW2, 12, SZ_SD)
    sd = sr(SW2)
    g.vmem(f"buffer_load_dwordx2 v[206:207], v202, {sd}, s91 offen", "m")
    g.vmem(f"buffer_load_dwordx4 v[208:211], v200, {sd}, s91 offen", "m")
    g.vmem(f"buffer_load_dwordx2 v[212:213], v201, {sd}, s91 offen", "m")
    g.vmem(f"buffer_load_dwordx4 v[214:217], v200, {sd}, s91 offen offset:1024", "m")
    g.srd(SW2, 14, D * 2)
    g.vmem(f"buffer_load_ushort v205, v204, {sd}, 0 offen", "m")
    g.srd(SW2, 20, F * 2)
    g(f"s_lshl_b32 s89, s{sFT}, 7\ns_lshr_b32 s90, s{sWAVE}, 1\ns_lshl_b32 s90, s90, 6\ns_add_u32 s89, s89, s90\ns_min_u32 s89, s89, {F*2}\nv_lshlrev_b32 v203, 4, v5")
    for p in range(2):
        g.vmem(f"buffer_load_dwordx4 {vr(32+4*p,4)}, v203, {sd}, s89 offen offset:{32*p}", "m")
    g.srd(SW1, 18, S * F * 2)
    g(f"""
s_mul_i32 s64, s{sWAVE}, {512*3584}
s_lshl_b32 s62, s{sFT}, 7
s_add_u32 s64, s64, s62
s_add_u32 s65, s64, {32*16*3584}
s_mul_i32 s95, s{sDT1}, {37 if g.opt('rot', 1) else 0}
s_lshr_b32 s95, s95, 3
s_mul_i32 s66, s95, {16*3584}
s_add_u32 s66, s66, s64
s_cmp_lt_u32 s{sK}, s{sCNT}
s_cbranch_scc0 {{SKIP}}
""".replace("{SKIP}", (lab := g.lab("NW1"))))
    W1 = WPhase(g, 32, 10, SW1, 66, 16 * 3584, "w1", wrap=(64, 65))
    n0 = len(g.vm)
    W1.fill()
    g(f"{lab}:")
    g.window = g.vm[n0:]; del g.vm[n0:]
    return W1

def setup2(g):
    g(f"""
s_mul_i32 s{sST}, s{sK}, 9363
s_lshr_b32 s{sST}, s{sST}, 16
s_mul_i32 s{sDT2}, s{sST}, 7
s_sub_u32 s{sDT2}, s{sK}, s{sDT2}
s_lshl_b32 s89, s{sX}, 2
s_add_u32 s{sST}, s{sST}, s89
v_lshlrev_b32 v8, 12, v2
v_lshl_add_u32 v8, v3, 4, v8
v_add_u32 v9, {8*4096-1024}, v8
v_mul_u32_u24 v12, 7168, v5
v_lshl_add_u32 v12, v6, 4, v12
s_and_b32 s62, s{sWAVE}, 1
s_lshl_b32 s62, s62, 9
v_add_u32 v16, s62, v12
s_xor_b32 s62, s62, 512
v_add_u32 v17, s62, v12
v_bfe_u32 v7, v1, 2, 2
v_lshl_add_u32 v4, v5, 3, v7
v_lshlrev_b32 v21, 7, v4
v_bfe_u32 v4, v1, 4, 1
v_and_b32 v7, 2, v7
v_xor_b32 v4, v4, v7
v_lshl_add_u32 v21, v4, 5, v21
v_and_b32 v7, 3, v1
v_lshl_add_u32 v21, v7, 3, v21
s_lshr_b32 s62, s{sWAVE}, 1
s_lshl_b32 s62, s62, 6
v_xor_b32 v21, s62, v21
v_add_u32 v13, s{sRING}, v21
v_xor_b32 v14, 64, v13
v_lshlrev_b32 v4, 4, v1
s_lshl_b32 s62, s{sWAVE}, 14
v_add_u32 v15, s62, v4
s_xor_b32 s63, s62, {1*16384}
s_add_u32 s63, s63, {1*4096}
v_add_u32 v18, s63, v4
s_xor_b32 s63, s62, {2*16384}
s_add_u32 s63, s63, {2*4096}
v_add_u32 v19, s63, v4
s_xor_b32 s63, s62, {3*16384}
s_add_u32 s63, s63, {3*4096}
v_add_u32 v20, s63, v4
s_mul_i32 s67, s{sWAVE}, {448*4096}
s_lshl_b32 s62, s{sST}, 7
s_add_u32 s67, s67, s62
s_lshl_b32 s89, s{sST}, 6
s_lshr_b32 s90, s{sWAVE}, 1
s_lshl_b32 s90, s90, 5
s_add_u32 s89, s89, s90
v_add_u32 v49, s89, v6
v_mul_u32_u24 v195, 896, v49
v_lshl_add_u32 v195, v5, 4, v195
s_lshl_b32 s{sOUT}, s{sDT2}, 7
s_and_b32 s90, s{sWAVE}, 1
s_lshl_b32 s90, s90, 6
s_add_u32 s{sOUT}, s{sOUT}, s90
v_lshlrev_b32 v22, 1, v49
v_lshlrev_b32 v49, 3, v49
v_add_u32 v49, {hx(WS_ST)}, v49
s_lshl_b32 s62, s{sWAVE}, 13
s_add_u32 s62, s62, {hx(WS_FA)}
v_lshlrev_b32 v23, 7, v1
v_add_u32 v23, s62, v23
s_lshr_b32 s62, s2, 5
s_lshl_b32 s62, s62, 7
s_add_u32 s62, s62, {hx(WS_FA)}
v_mul_u32_u24 v24, {7*128}, v6
v_add_u32 v24, s62, v24
""")
    g.srd(SW2, 22, S * F * 2)

def x_loads(g, j):
    if j == 0:
        g.srd(SA, 4, SZ_SD)
        for p in range(2):
            g.vmem(f"buffer_load_dwordx4 {vr(40+4*p,4)}, v195, {sr(SA)}, s{sOUT} offen offset:{32*p}", "x")
    else:
        g.srd(SB, 24, S * 2)
        g.vmem(f"buffer_load_ushort v48, v22, {sr(SB)}, 0 offen", "x")

def conv_prep(g):
    g(f"""
s_lshr_b32 s62, s{sWAVE}, 1
s_mul_i32 s{sCV}, s62, {CH}
s_add_u32 s{sCV}, s{sCV}, {L_CV}
v_add_u32 v219, s{sCV}, v200
""")
    for q in range(2):
        b = 206 + 6 * q; o = 64 + 1024 * q
        g.lds(f"ds_write_b128 v219, {vr(b+2,4)} offset:{o}", "cw")
        for k in range(4): g(f"v_alignbit_b32 v{220+k}, v{b+2+k}, v{b+1+k}, 16")
        g.lds(f"ds_write_b128 v219, v[220:223] offset:{HC+o}", "cw")
        for k in range(4): g(f"v_mov_b32 v{224+k}, v{b+1+k}")
        g.lds(f"ds_write_b128 v219, v[224:227] offset:{2*HC+o}", "cw")
        for k in range(4): g(f"v_alignbit_b32 v{228+k}, v{b+1+k}, v{b+k}, 16")
        g.lds(f"ds_write_b128 v219, v[228:231] offset:{3*HC+o}", "cw")
        yield
    g(f"""
v_mov_b64 v[232:233], 0
v_mov_b64 v[234:235], 0
v_lshrrev_b32 v236, 2, v1
v_min_u32 v236, 4, v236
v_mul_u32_u24 v236, {HC}, v236
v_lshlrev_b32 v237, 4, v1
v_subrev_u32 v238, 256, v237
v_and_b32 v237, 48, v237
v_cmp_gt_u32 vcc, 16, v1
v_and_b32 v239, 15, v1
v_lshrrev_b32 v240, 4, v1
v_cndmask_b32 v237, v238, v237, vcc
v_add3_u32 v236, v236, v237, s{sCV}
s_mov_b32 exec_hi, 0xffff
""")
    g.lds("ds_write_b128 v236, v[232:235]", "cw")
    g(f"""
s_mov_b32 exec_hi, -1
s_and_b32 s62, s{sWAVE}, 1
s_lshl_b32 s63, s62, 8
v_sub_u32 v241, 3, v239
v_and_b32 v241, 3, v241
v_add3_u32 v192, v239, v241, 9
v_lshlrev_b32 v242, 3, v240
v_sub_u32 v192, v192, v242
v_mul_u32_u24 v241, {HC}, v241
v_lshl_add_u32 v192, v192, 1, v241
s_add_u32 s96, s{sCV}, s63
v_add3_u32 v192, v192, s96, 64
""")
    yield
    g(f"""
v_lshlrev_b32 v193, 5, v239
v_lshl_add_u32 v193, v240, 4, v193
s_sub_u32 s96, s{sCV}, s63
s_add_u32 s96, s96, {4*HC+512-32}
v_add_u32 v193, s96, v193
v_lshlrev_b32 v194, 5, v239
v_and_b32 v242, 1, v240
v_lshl_add_u32 v194, v242, 9, v194
v_lshrrev_b32 v242, 1, v240
v_lshl_add_u32 v194, v242, 4, v194
s_lshl_b32 s63, s62, 11
s_add_u32 s{sZ}, s{sZ}, s63
s_add_u32 s{sZ}, s{sZ}, {hx(WS_ZT)}
v_lshrrev_b32 v242, 3, v239
s_lshl_b32 s62, s62, 3
v_add3_u32 v242, v242, s62, 2
v_cmp_eq_u32 vcc, v242, v240
v_and_b32 v243, 1, v239
v_lshlrev_b32 v244, 16, v205
v_cndmask_b32 v205, 0, v205, vcc
v_cndmask_b32 v244, 0, v244, vcc
v_cmp_eq_u32 vcc, 0, v243
v_bfe_u32 v245, v239, 1, 2
s_nop 0
v_cndmask_b32 v205, v205, v244, vcc
""")
    yield
    for k in range(4):
        g(f"v_cmp_eq_u32 vcc, {3-k}, v245\ns_nop 1\nv_cndmask_b32 v{196+k}, 0, v205, vcc")
    yield

def kv_dma(g):
    g(f"""
s_and_b32 s62, s{sWAVE}, 1
s_lshl_b32 s62, s62, 11
s_add_u32 s62, s62, s{sCV}
s_add_u32 m0, s62, {4*HC+512}
s_sub_u32 s63, s{sZ}, {hx(WS_ZT - WS_KVT)}
v_lshlrev_b32 v4, 4, v1
""")
    g.vmem(f"buffer_load_dwordx4 v4, {WS}, s63 offen sc1 lds", "kv")
    g.vmem(f"buffer_load_dwordx4 v4, {WS}, s63 offen offset:1024 sc1 lds", "kv")

def frag_prefetch(g, base, nq, i0, n, step, rot):
    g(f"""
v_lshrrev_b32 v64, 4, v1
v_mul_u32_u24 v64, {nq}, v64
v_bfe_u32 v65, v1, 3, 1
v_add_u32 v64, v64, v65
v_mul_u32_u24 v64, 7168, v64
v_and_b32 v65, 7, v1
v_lshl_add_u32 v64, v65, 7, v64
s_lshl_b32 s96, s62, 10
s_add_u32 s96, s96, {hx(base)}
s_add_u32 s63, s63, {i0}
""")
    if rot: g(f"s_mul_i32 s97, s62, 37\ns_lshr_b32 s97, s97, 3\ns_add_u32 s63, s63, s97")
    for i in range(n):
        if rot: g("s_and_b32 s97, s63, 31\ns_mul_i32 s97, s97, 14336")
        else: g(f"s_min_u32 s97, s63, {nq//2 - 1}\ns_mul_i32 s97, s97, 14336")
        g(f"s_add_u32 s97, s97, s96\nbuffer_load_dword v{66+i}, v64, {WS}, s97 offen sc1\ns_add_u32 s63, s63, {step}")

def build(cfg):
    g = Gen(cfg)
    g(f"""
s_cmp_ge_u32 s2, 256
s_cbranch_scc1 L_END
s_load_dwordx16 s[4:19], s[0:1], 0
s_load_dwordx2 s[28:29], s[0:1], 104
s_load_dwordx8 s[20:27], s[0:1], 64
v_lshrrev_b32 v2, 6, v0
v_and_b32 v1, 63, v0
v_readfirstlane_b32 s{sWAVE}, v2
""")
    if g.prof: g("s_memrealtime s[98:99]")
    g(f"""
v_lshrrev_b32 v5, 5, v1
v_and_b32 v6, 31, v1
v_mov_b32 v69, {hx(OOB)}
s_cmp_ge_u32 s{sWAVE}, 2
s_cbranch_scc1 L_LN
""")
    g(f"""
s_mul_i32 s93, s2, 9363
s_lshr_b32 s93, s93, 16
s_mul_i32 s94, s93, 7
s_sub_u32 s94, s2, s94
v_lshrrev_b32 v62, 4, v1
v_and_b32 v63, 15, v1
s_lshl_b32 s64, s93, 1
s_add_u32 s64, s64, s{sWAVE}
s_lshl_b32 s64, s64, 2
v_add_u32 v64, s64, v62
s_lshl_b32 s65, s94, 4
v_add_u32 v65, s65, v63
v_mul_u32_u24 v66, 7168, v64
v_lshl_add_u32 v66, v65, 3, v66
v_add_u32 v67, 3584, v66
v_subrev_u32 v68, 2688, v66
v_cmp_eq_u32 vcc, 0, v64
v_lshlrev_b32 v70, 5, v65
s_cmp_ge_u32 s2, 224
v_cndmask_b32 v68, v68, v69, vcc
s_waitcnt lgkmcnt(0)
""")
    g("s_cbranch_scc1 L_KVSKIP")
    g.srd(SA, 6, SZ_SD); g.srd(SB, 8, SZ_SD); g.srd(SC, 10, D * 8)
    KR, VR_ = 80, 102
    for j in range(3):
        g.vmem(f"buffer_load_dwordx2 {vr(KR+2*j,2)}, v68, {sr(SA)}, 0 offen offset:{896*j}", "k")
    for j in range(8):
        g.vmem(f"buffer_load_dwordx2 {vr(KR+6+2*j,2)}, v{66 + j//4}, {sr(SA)}, 0 offen offset:{896*(j%4)}", "k")
    for j in range(8):
        g.vmem(f"buffer_load_dwordx2 {vr(VR_+2*j,2)}, v{66 + j//4}, {sr(SB)}, 0 offen offset:{896*(j%4)}", "k")
    g.vmem(f"buffer_load_dwordx4 v[72:75], v70, {sr(SC)}, 0 offen", "k")
    g.vmem(f"buffer_load_dwordx4 v[76:79], v70, {sr(SC)}, 0 offen offset:16", "k")
    g("L_KVSKIP:")
    def common_head():
        if g.prof: g("v_mov_b32 v254, 0\nv_writelane_b32 v254, s98, 0")
        g(f"s_mov_b32 s{sMASK}, 0xffff0000\ns_and_b32 s{sX}, s2, 7\ns_lshr_b32 s{sK}, s2, 3\nv_mov_b32 v7, {hx(WS_EP)}")
        g.srd(SWS, 28, WS_SIZE)
        g("s_barrier")
        g.vmem(f"buffer_load_dword v{vTAG}, v7, {WS}, 0 offen sc1", "m")
        W = setup(g)
        setup2(g)
        return W
    common_head()
    g("s_cmp_ge_u32 s2, 224\ns_cbranch_scc1 L_A1")
    g(f"""
s_lshl_b32 s62, s{sWAVE}, 2
v_add_u32 v62, s62, v62
v_and_b32 v71, 7, v63
v_xor_b32 v71, v62, v71
v_lshlrev_b32 v71, 4, v71
v_lshl_add_u32 v71, v63, 9, v71
s_mov_b32 s97, {1 if g.opt('dry', 1) else 0}
""")
    if not g.opt('dry', 1): g(f"s_waitcnt vmcnt({len(g.vm) - g.vm[::-1].index('k') and g.vm[::-1].index('k')})")
    g("L_KVC:")
    W = 128
    for p in range(2):
        a0, a1, b0, b1 = 72 + 4*p, 73 + 4*p, 74 + 4*p, 75 + 4*p
        o = W + 8 * p
        g(f"v_lshlrev_b32 v{o}, 16, v{a0}\nv_lshlrev_b32 v{o+1}, 16, v{b0}\nv_and_b32 v{o+2}, s{sMASK}, v{a0}\nv_and_b32 v{o+3}, s{sMASK}, v{b0}")
        g(f"v_lshlrev_b32 v{o+4}, 16, v{a1}\nv_lshlrev_b32 v{o+5}, 16, v{b1}\nv_and_b32 v{o+6}, s{sMASK}, v{a1}\nv_and_b32 v{o+7}, s{sMASK}, v{b1}")
    KU, KO = 144, 168
    for p in range(2):
        for r in range(11):
            g(f"v_lshlrev_b32 v{KU+2*r}, 16, v{KR+2*r+p}\nv_and_b32 v{KU+2*r+1}, s{sMASK}, v{KR+2*r+p}")
        for t in range(4):
            for j in range(8):
                o = KO + 2 * j; r = j + 3 - t
                if t == 0: g(f"v_pk_mul_f32 {vr(o,2)}, {vr(KU+2*r,2)}, {vr(W+8*p,2)}")
                else: g(f"v_pk_fma_f32 {vr(o,2)}, {vr(KU+2*r,2)}, {vr(W+8*p+2*t,2)}, {vr(o,2)}")
        for j in range(8):
            g(f"v_lshlrev_b32 v{KU+2*j}, 16, v{VR_+2*j+p}\nv_and_b32 v{KU+2*j+1}, s{sMASK}, v{VR_+2*j+p}")
        for j in range(8):
            g(f"v_pk_mul_f32 {vr(KO+2*j,2)}, {vr(KO+2*j,2)}, {vr(KU+2*j,2)}")
        for c in range(2):
            u = 220 + 8 * p + 4 * c
            for m in range(4):
                g(f"v_cvt_pk_bf16_f32 v{u+m}, v{KO+2*(7-2*m)+c}, v{KO+2*(6-2*m)+c}")
            g(f"ds_write_b128 v71, {vr(u,4)} offset:{L_KVX + (2*p+c)*128}")
    def dry_tail(top, tag):
        n = g.vm[::-1].index(tag)
        g(f"s_cmp_eq_u32 s97, 0\ns_cbranch_scc1 L_A1\ns_mov_b32 s97, 0")
        lb = g.lab("DW")
        g(f"s_cmp_lt_u32 s{sK}, s{sCNT}\ns_cbranch_scc1 {lb}\ns_waitcnt vmcnt({n})\n{lb}:\ns_waitcnt vmcnt({n + len(g.window)})\ns_branch {top}")
    dry_tail("L_KVC", "k")
    g.vm = []; g.lg = []
    g(f"""
L_LN:
s_sub_u32 s62, s{sWAVE}, 2
s_lshl_b32 s62, s62, 2
v_add_u32 v64, s62, v5
s_lshl_b32 s63, s2, 3
v_add_u32 v65, s63, v64
v_mul_u32_u24 v66, 896, v65
v_lshl_add_u32 v66, v6, 4, v66
v_cmp_gt_u32 s[76:77], 28, v6
s_mul_i32 s93, s2, 9363
s_lshr_b32 s93, s93, 16
v_cndmask_b32 v66, v69, v66, s[76:77]
s_waitcnt lgkmcnt(0)
""")
    g.srd(SA, 4, SZ_SD)
    for p in range(2):
        g.vmem(f"buffer_load_dwordx4 {vr(72+8*p,4)}, v66, {sr(SA)}, 0 offen offset:{1792*p}", "xx")
        g.vmem(f"buffer_load_dwordx4 {vr(76+8*p,4)}, v66, {sr(SA)}, 0 offen offset:{1792*p+448}", "xx")
    W1 = common_head()
    g(f"""
s_mul_i32 s94, s93, 7
s_sub_u32 s94, s2, s94
v_cndmask_b32 v68, 0, 1.0, s[76:77]
v_mul_u32_u24 v69, {LP}, v64
v_lshl_add_u32 v69, v6, 4, v69
v_lshlrev_b32 v70, 3, v64
v_cmp_eq_u32 s[78:79], 0, v6
s_mov_b32 s97, 1
L_LNC:
""")
    U = [96, 128]; T = [112, 144]
    for p in range(2):
        for i in range(8):
            g(f"v_lshlrev_b32 v{U[p]+2*i}, 16, v{72+8*p+i}\nv_and_b32 v{U[p]+2*i+1}, s{sMASK}, v{72+8*p+i}")
        u, t = U[p], T[p]
        g(f"v_pk_add_f32 {vr(t,2)}, {vr(u,2)}, {vr(u+2,2)}\nv_pk_add_f32 {vr(t+2,2)}, {vr(u+4,2)}, {vr(u+6,2)}")
        g(f"v_pk_add_f32 {vr(t+4,2)}, {vr(u+8,2)}, {vr(u+10,2)}\nv_pk_add_f32 {vr(t+6,2)}, {vr(u+12,2)}, {vr(u+14,2)}")
        g(f"v_pk_add_f32 {vr(t,2)}, {vr(t,2)}, {vr(t+2,2)}\nv_pk_add_f32 {vr(t+4,2)}, {vr(t+4,2)}, {vr(t+6,2)}")
        g(f"v_pk_add_f32 {vr(t,2)}, {vr(t,2)}, {vr(t+4,2)}\nv_add_f32 v{t}, v{t}, v{t+1}")
    allred2(g, T[0], T[1], T[0]+1, T[1]+1)
    for p in range(2):
        u, t = U[p], T[p]
        g(f"v_mul_f32 v{t}, {hx(f2u(1.0/D))}, v{t}")
        for i in range(8):
            g(f"v_pk_add_f32 {vr(u+2*i,2)}, {vr(u+2*i,2)}, {vr(t,2)} op_sel_hi:[1,0] neg_lo:[0,1] neg_hi:[0,1]")
        g(f"v_pk_mul_f32 {vr(t+2,2)}, {vr(u,2)}, {vr(u,2)}\nv_pk_mul_f32 {vr(t+4,2)}, {vr(u+2,2)}, {vr(u+2,2)}")
        for i in range(2, 8):
            r = t + 2 + 2 * (i % 2)
            g(f"v_pk_fma_f32 {vr(r,2)}, {vr(u+2*i,2)}, {vr(u+2*i,2)}, {vr(r,2)}")
        g(f"v_pk_add_f32 {vr(t+2,2)}, {vr(t+2,2)}, {vr(t+4,2)}\nv_add_f32 v{t+2}, v{t+2}, v{t+3}\nv_mul_f32 v{t+2}, v{t+2}, v68")
    allred2(g, T[0]+2, T[1]+2, T[0]+3, T[1]+3)
    eps = hx(f2u(1e-5))
    for ins in ("v_mul_f32 v{t2}, {c}, v{t2}", "v_add_f32 v{t3}, {eps}, v{t2}", "v_rsq_f32 v{t1}, v{t3}", "v_mul_f32 v{t4}, v{t1}, v{t1}",
                "v_fmaak_f32 v{t4}, v{t4}, v{t2}, {eps}", "v_rsq_f32 v{t4}, v{t4}", "v_mul_f32 v{t4}, v{t4}, v{t1}"):
        for p in range(2):
            t = T[p]; g(ins.format(t1=t+1, t2=t+2, t3=t+3, t4=t+4, c=hx(f2u(1.0/D)), eps=eps))
    for p in range(2):
        u, t = U[p], T[p]
        for i in range(8):
            g(f"v_pk_mul_f32 {vr(u+2*i,2)}, {vr(u+2*i,2)}, {vr(t+4,2)} op_sel_hi:[1,0]")
        for i in range(8):
            g(f"v_cvt_pk_bf16_f32 v{160+8*p+i}, v{u+2*i}, v{u+2*i+1}")
    g("s_mov_b64 exec, s[76:77]")
    for p in range(2):
        g(f"ds_write_b128 v69, {vr(160+8*p,4)} offset:{L_LN + 2*p*LP}\nds_write_b128 v69, {vr(164+8*p,4)} offset:{L_LN + 2*p*LP+448}")
    g("s_mov_b64 exec, s[78:79]")
    for p in range(2):
        g(f"ds_write_b64 v70, {vr(T[p],2)} offset:{L_ST + 16*p}")
    g("s_mov_b64 exec, -1")
    dry_tail("L_LNC", "xx")
    g.vm = []; g.lg = []
    g(f"""
L_A1:
v_bfe_u32 v64, v1, 2, 2
v_mul_u32_u24 v64, {LP}, v64
v_lshrrev_b32 v65, 4, v0
v_lshl_add_u32 v64, v65, 5, v64
v_and_b32 v65, 3, v1
v_lshl_add_u32 v64, v65, 3, v64
v_lshlrev_b32 v66, 4, v0
s_mul_i32 s62, s2, 7168
s_add_u32 s63, s62, 4096
s_lshl_b32 s96, s2, 6
s_add_u32 s96, s96, {hx(WS_ST)}
v_lshrrev_b32 v67, 5, v0
v_and_b32 v68, 7, v1
v_xor_b32 v67, v67, v68
v_lshlrev_b32 v67, 4, v67
v_lshrrev_b32 v68, 3, v0
v_lshl_add_u32 v67, v68, 12, v67
s_lshl_b32 s78, s94, 18
s_lshl_b32 s79, s93, 7
s_add_u32 s78, s78, s79
s_add_u32 s78, s78, {hx(WS_KVT)}
s_add_u32 s79, s78, {32*4096}
s_waitcnt lgkmcnt(0)
s_barrier
""")
    g.stamp(1)
    g(f"""
ds_read_b64_tr_b16 v[72:73], v64 offset:{L_LN}
ds_read_b64_tr_b16 v[74:75], v64 offset:{L_LN + 4*LP}
ds_read_b128 v[80:83], v66 offset:{L_KVX}
ds_read_b128 v[84:87], v66 offset:{L_KVX + 4096}
s_cmp_eq_u32 s{sWAVE}, 3
s_cbranch_scc1 L_A2
ds_read_b64_tr_b16 v[76:77], v64 offset:{L_LN + 512}
ds_read_b64_tr_b16 v[78:79], v64 offset:{L_LN + 4*LP + 512}
s_waitcnt lgkmcnt(0)
buffer_store_dwordx4 v[76:79], v66, {WS}, s63 offen sc1
s_branch L_A3
L_A2:
ds_read_b128 v[76:79], v66 offset:{L_ST - 3072}
v_lshlrev_b32 v68, 4, v1
s_waitcnt lgkmcnt(0)
s_mov_b64 exec, 15
buffer_store_dwordx4 v[76:79], v68, {WS}, s96 offen sc1
s_mov_b64 exec, -1
L_A3:
buffer_store_dwordx4 v[72:75], v66, {WS}, s62 offen sc1
s_cmp_ge_u32 s2, 224
s_cbranch_scc1 L_A4
buffer_store_dwordx4 v[80:83], v67, {WS}, s78 offen sc1
buffer_store_dwordx4 v[84:87], v67, {WS}, s79 offen sc1
L_A4:
s_lshl_b32 s96, s2, 7
s_add_u32 s96, s96, {hx(WS_FA)}
s_waitcnt vmcnt(0)
v_add_u32 v{vTAG}, 1, v{vTAG}
s_barrier
s_cmp_lg_u32 s{sWAVE}, 0
s_cbranch_scc1 L_A5
""")
    flag_store(g, 96)
    g("L_A5:")
    g.stamp(2)
    g(f"s_cmp_lt_u32 s{sK}, s{sCNT}\ns_cbranch_scc0 L_NOG1")
    cp = conv_prep(g)
    for i in range(32):
        W1.step()
        if 1 <= i <= 12 and i % 2: next(cp, None)
        if i == 26: poll_issue(g, [23, 24], "pa")
    for _ in cp: pass
    g.stamp(3)
    poll_check(g, [23, 24], "pa")
    g.stamp(4)
    g(f"""
s_mul_i32 s64, s{sWAVE}, {64*7168}
s_lshl_b32 s62, s{sDT1}, 10
s_add_u32 s64, s64, s62
s_add_u32 s65, s64, {64*7168}
s_mul_i32 s68, s95, 14336
s_add_u32 s68, s68, s64
""")
    W2 = WPhase(g, 28, 8, SW2, 67, 16 * 4096, "w2")
    def tail1(j):
        if 0 <= j < NR: W2.issue()
        elif j >= NR: x_loads(g, j - NR)
    s_phase(g, 32, True, 68, tail1, wrap=(64, 65), head=lambda: kv_dma(g))
    g.stamp(5)
    g("s_nop 7")
    def epi1(W, real):
        if real: reduce4(g, tick=W.step)
        else: W.step()
        g.stamp(6)
        c = math.sqrt(2 / math.pi); l2e = math.log2(math.e)
        k0 = -2 * c * l2e; k1 = k0 * 0.044715
        if real:
            g(f"""
s_mov_b32 s62, {hx(f2u(k1))}
v_mov_b32 v52, {hx(f2u(k0))}
s_lshr_b32 s63, s{sWAVE}, 1
s_lshl_b32 s64, s{sFT}, 3
s_lshl_b32 s63, s63, 2
s_add_u32 s64, s64, s63
s_mul_i32 s64, s64, 7168
s_lshl_b32 s63, s{sDT1}, 10
s_add_u32 s64, s64, s63
s_add_u32 s64, s64, {hx(WS_UF)}
s_add_u32 s65, s64, {2*7168}
v_permlane32_swap_b32 v32, v34
v_permlane32_swap_b32 v33, v35
v_permlane32_swap_b32 v36, v38
v_permlane32_swap_b32 v37, v39
""")
        for rg in range(4):
            b = 32 + 2 * rg; u = ACC + 4 * rg
            if real:
                g(f"v_lshlrev_b32 v56, 16, v{b}\nv_and_b32 v57, s{sMASK}, v{b}\nv_lshlrev_b32 v58, 16, v{b+1}\nv_and_b32 v59, s{sMASK}, v{b+1}")
                g(f"v_pk_add_f32 {vr(u,2)}, {vr(u,2)}, v[56:57]\nv_pk_add_f32 {vr(u+2,2)}, {vr(u+2,2)}, v[58:59]")
                g(f"v_pk_mul_f32 v[56:57], {vr(u,2)}, {vr(u,2)}\nv_pk_mul_f32 v[58:59], {vr(u+2,2)}, {vr(u+2,2)}")
                for r in range(4): g(f"v_fma_f32 v{56+r}, v{56+r}, s62, v52")
                g(f"v_pk_mul_f32 v[56:57], v[56:57], {vr(u,2)}\nv_pk_mul_f32 v[58:59], v[58:59], {vr(u+2,2)}")
                for r in range(4): g(f"v_exp_f32 v{56+r}, v{56+r}")
                for r in range(4): g(f"v_add_f32 v{56+r}, 1.0, v{56+r}")
                for r in range(4): g(f"v_rcp_f32 v{56+r}, v{56+r}")
                g("s_nop 0")
                g(f"v_pk_mul_f32 v[56:57], v[56:57], {vr(u,2)}\nv_pk_mul_f32 v[58:59], v[58:59], {vr(u+2,2)}")
                g(f"v_cvt_pk_bf16_f32 v{b}, v56, v57\nv_cvt_pk_bf16_f32 v{b+1}, v58, v59")
            if rg & 1:
                x = b - 2
                if real:
                    g(f"s_nop 1\nv_permlane32_swap_b32 v{x}, v{x+2}\nv_permlane32_swap_b32 v{x+1}, v{x+3}")
                    g.vmem(f"buffer_store_dwordx4 {vr(x,4)}, v16, {WS}, s{64 + rg//2} offen sc1", "ust")
                else:
                    g.vmem(f"buffer_load_dword v253, v69, {WS}, 0 offen", "ust")
            if rg < 3 and g.opt("w2epi", 1): W.step()
        g.stamp(7)
    epi1(W2, True)
    g(f"s_lshl_b32 s96, s{sT1}, 2\ns_add_u32 s96, s96, s{sWAVE}\ns_lshl_b32 s96, s96, 7\ns_add_u32 s96, s96, {hx(WS_FU)}\ns_branch L_MID")
    mid = (list(g.vm), list(g.lg), W2.issued, W2.read)
    g.vm = []; g.lg = []
    g("L_NOG1:")
    g(f"""
s_sub_u32 s62, 31, s{sK}
s_min_u32 s62, s62, 6
s_lshl_b32 s62, s62, 16
s_mul_i32 s63, s{sWAVE}, {448*4096}
s_add_u32 s62, s62, s63
s_lshl_b32 s63, s{sX}, 9
s_add_u32 s62, s62, s63
v_lshrrev_b32 v64, 2, v1
v_lshlrev_b32 v64, 12, v64
v_and_b32 v65, 3, v1
v_lshl_add_u32 v64, v65, 7, v64
v_mov_b32 v69, {hx(OOB)}
""")
    for i in range(g.opt("pfw2", 4)):
        g(f"buffer_load_dword v{66+i}, v64, {sr(SW2)}, s62 offen\ns_add_u32 s62, s62, {7*16*4096}")
    cp = conv_prep(g)
    for _ in cp: pass
    g(f"v_add_u32 v25, {64*128}, v23\nv_and_b32 v25, {hx(256*128-1 + WS_FA)}, v25\nv_add_u32 v26, {64*128}, v25\nv_and_b32 v26, {hx(256*128-1 + WS_FA)}, v26\nv_add_u32 v27, {64*128}, v26\nv_and_b32 v27, {hx(256*128-1 + WS_FA)}, v27")
    g.stamp(3)
    poll_issue(g, [23, 25, 26, 27], "pa"); poll_check(g, [23, 25, 26, 27], "pa")
    g.stamp(4)
    i0 = g.opt("h0", 12)
    if i0 < 32:
        g(f"""
s_sub_u32 s64, 31, s{sK}
s_lshl_b32 s64, s64, 2
s_add_u32 s64, s64, s{sWAVE}
s_cmp_ge_u32 s64, 28
s_cbranch_scc1 L_NOHP
s_mul_i32 s63, s64, 9363
s_lshr_b32 s63, s63, 16
s_mul_i32 s62, s63, 7
s_sub_u32 s62, s64, s62
""")
        frag_prefetch(g, WS_HF, 64, i0, (32 - i0) // 4, 4, g.opt('rot', 1))
        g("L_NOHP:")
    g(f"s_cmp_ge_u32 s{sK}, 28\ns_cbranch_scc1 L_HELP")
    kv_dma(g)
    W2d = WPhase(g, 28, 8, SW2, 67, 16 * 4096, "w2")
    W2d.fill()
    x_loads(g, 0); x_loads(g, 1)
    g.wvm("kv")
    g.wall(vm=False)
    g("s_barrier")
    epi1(W2d, False)
    g(f"s_mov_b32 s96, {hx(WS_EP + 128)}")
    assert mid == (g.vm, g.lg, W2d.issued, W2d.read), (mid, g.vm, g.lg)
    g("L_MID:")
    g.stamp(8)
    CA, CB = 96, 128
    def rdA(t):
        g.lds(f"ds_read_b64 {vr(CA+4*t,2)}, v192 offset:{512*t}", f"A{t}")
        g.lds(f"ds_read_b64 {vr(CA+4*t+2,2)}, v192 offset:{512*t+8}", f"A{t}")
    def rdB(u): g.lds(f"ds_read_b128 {vr(CB+4*u,4)}, v193 offset:{512*u}", f"B{u}")
    nm = [0]; per = g.opt("wper", 8)
    def mf(acc, x, y, c=None):
        g(f"v_mfma_f32_16x16x32_bf16 {vr(ACC+4*acc,4)}, {x}, {y}, {c if c is not None else vr(ACC+4*acc,4)}")
        nm[0] += 1
        if nm[0] % per == 0: W2.step()
    g(f"""
s_mul_i32 s62, s{sWAVE}, 49
s_add_u32 s62, s62, s{sDT2}
v_lshrrev_b32 v23, 2, v1
v_min_u32 v23, 6, v23
v_mul_u32_u24 v23, 7, v23
v_add_u32 v23, s62, v23
v_and_b32 v24, 3, v1
v_lshl_add_u32 v23, v23, 2, v24
v_lshlrev_b32 v23, 7, v23
v_add_u32 v23, {hx(WS_FU)}, v23
""")
    for u in range(8): rdB(u)
    for t in range(7, 4, -1): rdA(t)
    for u in range(8):
        g.wlg(f"B{u}")
        mf(u, "v[196:199]", vr(CB + 4 * u, 4), "0")
        if u < 5: rdA(4 - u)
    for it in range(4):
        last = it == 3
        if not last: g("v_add_u32 v192, 64, v192\nv_subrev_u32 v193, 64, v193")
        for t in range(7, -1, -1):
            g.wlg(f"A{t}")
            for u in range(0, 8 - t):
                g.wlg(f"B{u}")
                mf(t + u, vr(CA + 4 * t, 4), vr(CB + 4 * u, 4))
                if t == 0 and not last: rdB(u)
            if not last: rdA(t)
            if it == g.opt("uf_it", 0) and t == g.opt("uf_t", 1):
                g.wvm("ust"); flag_store(g, 96)
    g.stamp(9)
    poll_issue(g, [23], "pu")
    g(f"""
v_xor_b32 v4, {16384}, v15
s_bitcmp1_b32 s{sWAVE}, 0
s_nop 4
s_cbranch_scc1 L_ZX1
""")
    for r in range(4): g(f"ds_write_b128 v4, {vr(ACC+16+4*r,4)} offset:{r*1024}")
    g("s_branch L_ZX2\nL_ZX1:")
    for r in range(4): g(f"ds_write_b128 v4, {vr(ACC+4*r,4)} offset:{r*1024}")
    g("s_waitcnt lgkmcnt(0)")
    for r in range(0, 16, 2): g(f"v_mov_b64 {vr(ACC+r,2)}, {vr(ACC+16+r,2)}")
    g("L_ZX2:")
    g.wall(vm=False)
    g("s_barrier")
    for r in range(4): g.lds(f"ds_read_b128 {vr(ACC+16+4*r,4)}, v15 offset:{r*1024}", f"zx{r}")
    while W2.read < 28: W2.step()
    for r in range(4):
        g.wlg(f"zx{r}")
        q = ACC + 4 * r
        g(f"v_pk_add_f32 {vr(q,2)}, {vr(q,2)}, {vr(q+16,2)}\nv_pk_add_f32 {vr(q+2,2)}, {vr(q+2,2)}, {vr(q+18,2)}")
        z = ACC + 32 + 2 * r
        g(f"v_cvt_pk_bf16_f32 v{z}, v{q}, v{q+1}\nv_cvt_pk_bf16_f32 v{z+1}, v{q+2}, v{q+3}")
        if r & 1:
            g(f"s_nop 1\nv_permlane16_swap_b32 v{z-2}, v{z}\nv_permlane16_swap_b32 v{z-1}, v{z+1}")
            g.vmem(f"buffer_store_dwordx4 {vr(z-2,4)}, v194, {WS}, s{sZ} offen offset:{512*(r-1)} sc1", "zst")
    g(f"""
s_lshl_b32 s96, s2, 2
s_add_u32 s96, s96, s{sWAVE}
s_lshl_b32 s96, s96, 7
s_add_u32 s96, s96, {hx(WS_FZ)}
s_mul_i32 s68, s{sWAVE}, {56*7168}
s_lshl_b32 s62, s{sDT2}, 10
s_add_u32 s68, s68, s62
s_add_u32 s68, s68, {hx(WS_UF)}
s_lshl_b32 s62, s{sDT2}, 6
s_lshl_b32 s63, s{sWAVE}, 4
s_add_u32 s62, s62, s63
s_lshl_b32 s64, s62, 12
s_lshl_b32 s63, s{sST}, 7
s_add_u32 s64, s64, s63
s_add_u32 s64, s64, {hx(WS_ZT)}
s_lshl_b32 s62, s62, 1
s_lshr_b32 s63, s{sST}, 4
s_add_u32 s62, s62, s63
s_lshl_b32 s62, s62, 7
s_add_u32 s62, s62, {hx(WS_FZ)}
v_and_b32 v7, 15, v1
v_lshlrev_b32 v7, 8, v7
v_add_u32 v7, s62, v7
""")
    g.stamp(10)
    poll_check(g, [23], "pu")
    g.stamp(11)
    zp = g.opt("zp", 2)
    def tail2(j):
        if j == 8 - 28:
            flag_store(g, 96)
        if j == 0: g.vmem(f"buffer_load_dwordx2 v[50:51], v49, {WS}, 0 offen sc1", "st")
        if j == zp: poll_issue(g, [7], "pz")
        if j == zp + 2:
            poll_check(g, [7], "pz")
            g(f"s_mov_b32 m0, s{sRING}\ns_nop 0")
            g.vmem(f"buffer_load_dwordx4 v8, {WS}, s64 offen sc1 lds", "z")
            g.vmem(f"buffer_load_dwordx4 v9, {WS}, s64 offen offset:1024 sc1 lds", "z")
    s_phase(g, 28, False, 68, tail2)
    g.stamp(12)
    g("s_nop 7")
    l2e = math.log2(math.e)
    def pre2():
        g.srd(SA, 26, SZ_SD)
        g(f"""
v_lshlrev_b32 v54, 9, v5
v_sub_u32 v53, v21, v54
s_and_b32 s62, s{sWAVE}, 1
s_mul_i32 s62, s62, {2*RW}
s_add_u32 s62, s62, {L_RING}
v_add_u32 v53, s62, v53
v_lshlrev_b32 v48, 16, v48
v_permlane32_swap_b32 v40, v42
v_permlane32_swap_b32 v41, v43
v_permlane32_swap_b32 v44, v46
v_permlane32_swap_b32 v45, v47
s_mov_b32 s62, {hx(f2u(-l2e))}
""")
        g.wall(lg=False)
        g("v_mul_f32 v50, v50, v51")
    def zreads():
        pass
    reduce4(g, pre_barrier=pre2)
    g.stamp(14)
    for rg in range(4):
        g.lds(f"ds_read_b64_tr_b16 {vr(32+2*rg,2)}, v53 offset:{(rg>>1)*RW + (rg&1)*1024}", f"z{rg}")
    for rg in range(4):
        u = ACC + 4 * rg; x = 40 + 2 * rg; z = 32 + 2 * rg
        g(f"v_pk_add_f32 {vr(u,2)}, {vr(u,2)}, v[48:49] op_sel_hi:[1,0]\nv_pk_add_f32 {vr(u+2,2)}, {vr(u+2,2)}, v[48:49] op_sel_hi:[1,0]")
        for r in range(4): g(f"v_mul_f32 v{56+r}, s62, v{u+r}")
        for r in range(4): g(f"v_exp_f32 v{56+r}, v{56+r}")
        g(f"v_lshlrev_b32 v60, 16, v{x}\nv_and_b32 v61, s{sMASK}, v{x}\nv_lshlrev_b32 v62, 16, v{x+1}\nv_and_b32 v63, s{sMASK}, v{x+1}")
        for r in range(4): g(f"v_add_f32 v{56+r}, 1.0, v{56+r}")
        for r in range(4): g(f"v_rcp_f32 v{56+r}, v{56+r}")
        g.wlg(f"z{rg}")
        g(f"v_lshlrev_b32 v84, 16, v{z}\nv_and_b32 v85, s{sMASK}, v{z}\nv_lshlrev_b32 v86, 16, v{z+1}\nv_and_b32 v87, s{sMASK}, v{z+1}")
        g(f"v_pk_mul_f32 {vr(u,2)}, {vr(u,2)}, v[56:57]\nv_pk_mul_f32 {vr(u+2,2)}, {vr(u+2,2)}, v[58:59]")
        for r in range(4): g(f"v_fma_f32 v{56+r}, v{60+r}, v51, -v50")
        g(f"v_pk_mul_f32 {vr(u,2)}, {vr(u,2)}, v[84:85]\nv_pk_mul_f32 {vr(u+2,2)}, {vr(u+2,2)}, v[86:87]")
        g(f"v_pk_fma_f32 {vr(u,2)}, {vr(u,2)}, v[56:57], v[60:61]\nv_pk_fma_f32 {vr(u+2,2)}, {vr(u+2,2)}, v[58:59], v[62:63]")
        g(f"v_cvt_pk_bf16_f32 v{88+2*rg}, v{u}, v{u+1}\nv_cvt_pk_bf16_f32 v{89+2*rg}, v{u+2}, v{u+3}")
        if rg & 1:
            y = 88 + 2 * (rg - 1)
            g(f"s_nop 1\nv_permlane32_swap_b32 v{y}, v{y+2}\nv_permlane32_swap_b32 v{y+1}, v{y+3}")
            g(f"buffer_store_dwordx4 {vr(y,4)}, v195, {sr(SA)}, s{sOUT} offen offset:{16*(rg-1)}")
    g.stamp(15)
    g(f"""
s_or_b32 s62, s2, s{sWAVE}
s_cmp_lg_u32 s62, 0
s_cbranch_scc1 L_FIN
s_mov_b32 s96, {hx(WS_EP)}
""")
    flag_store(g, 96)
    g("s_branch L_FIN")
    g("L_HELP:")
    u0 = g.opt("u0", 16)
    if u0 < 28:
        g(f"""
s_sub_u32 s64, 31, s{sK}
s_lshl_b32 s64, s64, 2
s_add_u32 s64, s64, s{sWAVE}
s_cmp_ge_u32 s64, 14
s_cbranch_scc1 L_FIN
s_cmp_ge_u32 s64, 7
s_cselect_b32 s65, 1, 0
s_mul_i32 s66, s65, 7
s_sub_u32 s66, s64, s66
v_lshrrev_b32 v23, 2, v1
v_mul_u32_u24 v23, 7, v23
v_add_u32 v23, s66, v23
v_and_b32 v24, 3, v1
v_lshl_add_u32 v23, v23, 2, v24
v_lshlrev_b32 v23, 7, v23
v_add_u32 v23, {hx(WS_FU)}, v23
v_lshrrev_b32 v25, 2, v1
v_min_u32 v25, 11, v25
v_add_u32 v25, 16, v25
v_mul_u32_u24 v25, 7, v25
v_add_u32 v25, s66, v25
v_lshl_add_u32 v25, v25, 2, v24
v_lshlrev_b32 v25, 7, v25
v_add_u32 v25, {hx(WS_FU)}, v25
""")
        poll_issue(g, [23, 25], "ph"); poll_check(g, [23, 25], "ph")
        g.stamp(11)
        g("s_mov_b32 s62, s66\ns_mov_b32 s63, s65")
        frag_prefetch(g, WS_UF, 56, u0, (28 - u0 + 1) // 2, 2, 0)
    g("L_FIN:")
    if g.prof:
        g("s_waitcnt vmcnt(0)"); g.stamp(16)
        g(f"s_mov_b32 exec_hi, 0\ns_lshl_b32 s62, s2, 2\ns_add_u32 s62, s62, s{sWAVE}\ns_lshl_b32 s62, s62, 7\ns_add_u32 s62, s62, {hx(WS_PROF)}\nv_lshlrev_b32 v7, 2, v1")
        g(f"buffer_store_dword v254, v7, {WS}, s62 offen")
    g("L_END:")
    return g.text()

import gen2
HEADER = gen2.HEADER
def emit(cfg):
    if "spin" in cfg:
        cfg["prof"] = 1
        t = emit1(cfg).replace("; @launch grid", f"; @launch kernel={KNAME} grid")
        t = t.replace(".amdgcn_target", "; @launch kernel=spin_kernel grid=(1,1,1) block=(64,1,1) lds=0\n.amdgcn_target")
        return t + gen2.spin_kernel(cfg["spin"])
    return emit1(cfg)

def emit1(cfg):
    body = build(cfg)
    return HEADER + f"""; @launch grid=(256,1,1) block=(256,1,1) lds={LDS_TOTAL}
.amdgcn_target "amdgcn-amd-amdhsa--gfx950"
.text
.globl {KNAME}
.p2align 8
.type {KNAME},@function
{KNAME}:
{body}  s_endpgm
.section .rodata,"a"
.p2align 6
.amdhsa_kernel {KNAME}
  .amdhsa_next_free_vgpr 512
  .amdhsa_next_free_sgpr 102
  .amdhsa_accum_offset 256
  .amdhsa_group_segment_fixed_size 0
  .amdhsa_kernarg_size 112
  .amdhsa_user_sgpr_count 2
  .amdhsa_user_sgpr_kernarg_segment_ptr 1
  .amdhsa_system_sgpr_workgroup_id_x 1
.end_amdhsa_kernel
"""

if __name__ == "__main__":
    out = sys.argv[1]
    cfg = {}
    for kv in sys.argv[2:]:
        k, v = kv.split("="); cfg[k] = int(v)
    open(out, "w").write(emit(cfg))
    print("wrote", out)
```

```python
import sys, math, struct

S, D, F = 2048, 448, 1792
WS_HF, WS_KVT, WS_ST, WS_UF, WS_ZT = 0x0, 0x200000, 0x400000, 0x500000, 0x800000
WS_FA, WS_FU, WS_FZ, WS_EP = 0xA00000, 0xA10000, 0xA40000, 0xA60000
WS_PROF = 0x1000000
WS_SIZE = 0x1100000
SZ_SD = S * D * 2
OOB = 0x80000000
KNAME = "recurrent_scan__ssm_conv_h3__mixer_token_mlp__prompt_kernel"

NR = 6
RW = NR * 2048
L_RED, L_RING = 0, 65536
L_LN, L_ST, L_KVX = 0, 7680, 8192
LP = 960
HC = 4160
CH = 4 * HC + 4608
L_CV = L_RING + 4 * RW
LDS_TOTAL = L_CV + 2 * CH

def f2u(x): return struct.unpack("<I", struct.pack("<f", x))[0]
def hx(x): return f"0x{x & 0xffffffff:x}"
def vr(b, n): return f"v[{b}:{b+n-1}]" if n > 1 else f"v{b}"
def ar(b, n): return f"a[{b}:{b+n-1}]"
def sr(b): return f"s[{b}:{b+3}]"

class Gen:
    def __init__(self, cfg):
        self.l = []; self.cfg = cfg; self.vm = []; self.lg = []
        self.prof = bool(cfg.get("prof", 0)); self.nlab = 0
    def __call__(self, s):
        for ln in s.strip("\n").split("\n"):
            ln = ln.strip()
            if ln: self.l.append(ln if ln.endswith(":") else "  " + ln)
    def text(self): return "\n".join(self.l) + "\n"
    def lab(self, p): self.nlab += 1; return f"L_{p}{self.nlab}"
    def vmem(self, s, tag): self(s); self.vm.append(tag)
    def lds(self, s, tag): self(s); self.lg.append(tag)
    def _need(self, q, tag):
        if tag not in q: return None
        idx = len(q) - 1 - q[::-1].index(tag)
        n = len(q) - 1 - idx
        del q[:idx + 1]
        return n
    def wvm(self, tag):
        n = self._need(self.vm, tag)
        if n is not None: self(f"s_waitcnt vmcnt({min(n, 62)})")
    def wlg(self, tag):
        n = self._need(self.lg, tag)
        if n is not None: self(f"s_waitcnt lgkmcnt({min(n, 14)})")
    def wall(self, vm=True, lg=True):
        self("s_waitcnt " + " ".join(x for x, y in (("vmcnt(0)", vm), ("lgkmcnt(0)", lg)) if y))
        if vm: self.vm = []
        if lg: self.lg = []
    def srd(self, d, lo, nbytes):
        self(f"s_mov_b32 s{d}, s{lo}\ns_mov_b32 s{d+1}, s{lo+1}\ns_mov_b32 s{d+2}, {hx(nbytes)}\ns_mov_b32 s{d+3}, 0x20000")
    def stamp(self, i):
        if self.prof:
            self(f"s_memrealtime s[98:99]\ns_memtime s[100:101]\ns_waitcnt lgkmcnt(0)\nv_writelane_b32 v254, s98, {i}\nv_writelane_b32 v254, s100, {32+i}"); self.lg = []
    def opt(self, k, d=0): return self.cfg.get(k, d)

SWS, SA, SB, SC, SW2, SW1 = 32, 36, 40, 44, 48, 52
sWAVE, sX, sK, sMASK = 56, 57, 58, 59
sRING = 61
sT1, sCNT, sFT, sDT1, sST, sDT2, sOUT = 82, 83, 84, 85, 86, 87, 88
sZ, sCV = 69, 92
ACC, RNG = 64, 128
vTAG = 255
WS = sr(SWS)

def allred2(g, va, vb, ta, tb):
    for m in ("quad_perm:[1,0,3,2]", "quad_perm:[2,3,0,1]", "row_half_mirror", "row_mirror"):
        g(f"s_nop 0\nv_add_f32_dpp v{va}, v{va}, v{va} {m} row_mask:0xf bank_mask:0xf\nv_add_f32_dpp v{vb}, v{vb}, v{vb} {m} row_mask:0xf bank_mask:0xf")
    g(f"v_mov_b32 v{ta}, v{va}\nv_mov_b32 v{tb}, v{vb}\ns_nop 0\nv_permlane16_swap_b32 v{ta}, v{va}\nv_permlane16_swap_b32 v{tb}, v{vb}\ns_nop 0")
    g(f"v_add_f32 v{va}, v{va}, v{ta}\nv_add_f32 v{vb}, v{vb}, v{tb}")

def poll_issue(g, voffs, tag):
    for i, v in enumerate(voffs):
        g.vmem(f"buffer_load_dword v{250+i}, v{v}, {WS}, 0 offen sc1", tag)
def poll_check(g, voffs, tag, sleep=2):
    g.wvm(tag)
    for i, v in enumerate(voffs):
        name = g.lab("P")
        g(f"""
s_mov_b32 s60, 0
s_branch {name}_C
{name}_L:
s_sleep {sleep}
buffer_load_dword v{250+i}, v{v}, {WS}, 0 offen sc1
s_waitcnt vmcnt(0)
{name}_C:
v_cmp_ne_u32 vcc, v{vTAG}, v{250+i}
s_and_b64 exec, exec, vcc
s_cbranch_scc0 {name}_OK
s_add_u32 s60, s60, 1
s_cmp_lt_u32 s60, 0x8000
s_cbranch_scc1 {name}_L
{name}_OK:
s_mov_b64 exec, -1
""")
def poll_gated(g, voffs, sleep):
    g("s_mov_b64 exec, 1")
    poll_issue(g, voffs[:1], "gate"); poll_check(g, voffs[:1], "gate", sleep)
    poll_issue(g, voffs, "all"); poll_check(g, voffs, "all")

def flag_store(g, sline):
    g(f"v_mov_b32 v249, s{sline}\ns_mov_b64 exec, 1\nbuffer_store_dword v{vTAG}, v249, {WS}, 0 offen sc1\ns_mov_b64 exec, -1")

class WPhase:
    def __init__(self, g, n, vdma, srd, soff, inc, tag, wrap=None):
        self.g, self.n, self.vd, self.srd, self.so, self.inc, self.tag, self.wrap = g, n, vdma, srd, soff, inc, tag, wrap
        self.issued = 0; self.read = 0
    def issue(self):
        g = self.g; i = self.issued
        if i >= self.n: return
        assert i < self.read + NR
        if i >= NR: g.wlg(f"{self.tag}r{i-NR}")
        g(f"s_add_u32 m0, s{sRING}, {(i % NR) * 2048}")
        g(f"s_add_u32 s{self.so}, s{self.so}, {self.inc}" if i else "s_nop 0")
        if i and self.wrap: g(f"s_cmp_eq_u32 s{self.so}, s{self.wrap[1]}\ns_cselect_b32 s{self.so}, s{self.wrap[0]}, s{self.so}")
        g.vmem(f"buffer_load_dwordx4 v{self.vd}, {sr(self.srd)}, s{self.so} offen lds", f"{self.tag}d{i}")
        g.vmem(f"buffer_load_dwordx4 v{self.vd+1}, {sr(self.srd)}, s{self.so} offen offset:1024 lds", f"{self.tag}d{i}")
        self.issued += 1
    def issue2(self):
        g = self.g; i = self.issued
        assert i < NR
        g(f"s_add_u32 m0, s{sRING}, {(i % NR) * 2048}")
        g(f"s_add_u32 s{self.so}, s{self.so}, {self.inc}" if i else "s_nop 0")
        g.vmem(f"buffer_load_dwordx4 v{self.vd}, {sr(self.srd)}, s{self.so} offen lds", f"{self.tag}d{i}")
        yield
        g.vmem(f"buffer_load_dwordx4 v{self.vd+1}, {sr(self.srd)}, s{self.so} offen offset:1024 lds", f"{self.tag}d{i}")
        self.issued += 1
        yield
    def rd(self):
        g = self.g; i = self.read
        if i >= self.n: return
        g.wvm(f"{self.tag}d{i}")
        for h in range(2):
            for e in range(2):
                g.lds(f"ds_read_b64_tr_b16 {ar(8*i+4*h+2*e, 2)}, v{13+h} offset:{(i % NR)*2048 + e*512}", f"{self.tag}r{i}")
        self.read += 1
    def step(self):
        self.rd()
        while self.issued < min(self.n, self.read + NR - 1): self.issue()
    def micro(self):
        g = self.g
        while self.read < self.n:
            i = self.read
            g.wvm(f"{self.tag}d{i}")
            for h in range(2):
                for e in range(2):
                    g.lds(f"ds_read_b64_tr_b16 {ar(8*i+4*h+2*e, 2)}, v{13+h} offset:{(i % NR)*2048 + e*512}", f"{self.tag}r{i}")
                if h == 0: yield
            self.read += 1
            while self.issued < min(self.n, self.read + NR - 1):
                yield
                i = self.issued
                if i >= NR: g.wlg(f"{self.tag}r{i-NR}")
                g(f"s_add_u32 m0, s{sRING}, {(i % NR) * 2048}\ns_add_u32 s{self.so}, s{self.so}, {self.inc}")
                if self.wrap: g(f"s_cmp_eq_u32 s{self.so}, s{self.wrap[1]}\ns_cselect_b32 s{self.so}, s{self.wrap[0]}, s{self.so}")
                g.vmem(f"buffer_load_dwordx4 v{self.vd}, {sr(self.srd)}, s{self.so} offen lds", f"{self.tag}d{i}")
                yield
                g.vmem(f"buffer_load_dwordx4 v{self.vd+1}, {sr(self.srd)}, s{self.so} offen offset:1024 lds", f"{self.tag}d{i}")
                self.issued += 1
            yield
    def fill(self):
        while self.issued < min(self.n, self.read + NR): self.issue()

def s_phase(g, n, tr_is_A, soff, tail, head=None):
    PD = 7
    def ld(i, h):
        r = RNG + 8 * (i % 8) + 4 * h
        if i and not h: g(f"s_add_u32 s{soff}, s{soff}, {2*7168}")
        g.vmem(f"buffer_load_dwordx4 {vr(r,4)}, v{16+h}, {WS}, s{soff} offen sc1", f"s{i}")
    for i in range(PD): ld(i, 0); ld(i, 1)
    if head: head()
    g.wall(vm=False)
    for i in range(n):
        g.wvm(f"s{i}")
        r = RNG + 8 * (i % 8)
        tl = tail(i + PD - n)
        for h in range(2):
            for b in range(2):
                q = ACC + 16 * (2 * h + b)
                t = ar(8 * i + 4 * h, 4); d = vr(r + 4 * b, 4)
                x, y = (t, d) if tr_is_A else (d, t)
                g(f"v_mfma_f32_32x32x16_bf16 {vr(q,16)}, {x}, {y}, {vr(q,16) if i else '0'}")
                if b == 0:
                    if i + PD < n: ld(i + PD, h)
                    if tl: next(tl, None)
        if tl:
            for _ in tl: pass

def reduce4(g, pre_barrier=None, tick=None):
    for q in (1, 2, 3):
        for r in range(4):
            g.lds(f"ds_write_b128 v{17+q}, {vr(ACC+16*q+4*r,4)} offset:{r*1024}", "rw")
    if pre_barrier: pre_barrier()
    g.wall(vm=False)
    g("s_barrier")
    for r in range(4):
        for q in (1, 2, 3):
            g.lds(f"ds_read_b128 {vr(ACC+16*q+4*r,4)}, v15 offset:{q*4096 + r*1024}", f"rr{q}{r}")
    if tick: tick()
    for r in range(4):
        for q in (1, 2, 3):
            g.wlg(f"rr{q}{r}")
            for h in range(2):
                o = 4 * r + 2 * h
                g(f"v_pk_add_f32 {vr(ACC+o,2)}, {vr(ACC+o,2)}, {vr(ACC+16*q+o,2)}")

def setup(g):
    g(f"""
s_and_b32 s62, s{sX}, 1
s_sub_u32 s{sCNT}, 25, s62
s_mul_i32 s{sT1}, s{sX}, 49
s_add_u32 s{sT1}, s{sT1}, 1
s_lshr_b32 s{sT1}, s{sT1}, 1
s_add_u32 s{sT1}, s{sT1}, s{sK}
s_mul_i32 s{sFT}, s{sT1}, 9363
s_lshr_b32 s{sFT}, s{sFT}, 16
s_mul_i32 s{sDT1}, s{sFT}, 7
s_sub_u32 s{sDT1}, s{sT1}, s{sDT1}
v_lshrrev_b32 v2, 3, v1
v_and_b32 v3, 7, v1
v_lshrrev_b32 v4, 2, v1
v_and_b32 v4, 4, v4
v_xor_b32 v3, v3, v4
v_mul_u32_u24 v10, 3584, v2
v_lshl_add_u32 v10, v3, 4, v10
v_add_u32 v11, {8*3584-1024}, v10
s_mul_i32 s{sRING}, s{sWAVE}, {RW}
s_add_u32 s{sRING}, s{sRING}, {L_RING}
s_lshr_b32 s89, s{sWAVE}, 1
s_lshl_b32 s90, s2, 1
s_add_u32 s90, s90, s89
s_lshl_b32 s{sZ}, s90, 12
s_min_u32 s91, s{sZ}, {SZ_SD}
s_and_b32 s89, s{sWAVE}, 1
s_lshl_b32 s89, s89, 11
v_lshlrev_b32 v200, 4, v1
v_add_u32 v200, s89, v200
v_add_u32 v201, 1016, v200
v_subrev_u32 v202, 8, v200
v_mov_b32 v203, {hx(OOB)}
v_cmp_eq_u32 vcc, 0, v200
s_lshl_b32 s90, s90, 1
v_mov_b32 v204, s90
v_cndmask_b32 v202, v202, v203, vcc
""")
    g.srd(SW1, 18, S * F * 2)
    g.srd(SW2, 20, F * 2)
    g(f"""
s_lshl_b32 s74, s{sFT}, 7
s_lshr_b32 s90, s{sWAVE}, 1
s_lshl_b32 s90, s90, 6
s_add_u32 s74, s74, s90
s_min_u32 s74, s74, {F*2}
s_sub_u32 s75, 31, s{sK}
s_lshl_b32 s75, s75, 2
s_add_u32 s75, s75, s{sWAVE}
s_mov_b64 exec, 1
v_mov_b32 v218, 0
""")
    g.vmem(f"buffer_load_dword v219, v218, {sr(SW2)}, s74 offen", "m")
    g.srd(SW2, 14, D * 2)
    g.vmem(f"buffer_load_ushort v205, v204, {sr(SW2)}, 0 offen", "m")
    lb = g.lab("NH")
    g(f"""
s_mov_b64 exec, -1
s_and_b32 s89, s75, 3
s_lshl_b32 s89, s89, 5
s_lshr_b32 s90, s75, 2
s_add_u32 s89, s89, s90
s_mul_i32 s73, s89, {16*3584}
s_mul_i32 s90, s{sX}, 7
s_lshr_b32 s90, s90, 1
s_lshl_b32 s90, s90, 7
s_add_u32 s73, s73, s90
v_lshrrev_b32 v28, 2, v1
v_mul_u32_u24 v28, 3584, v28
v_and_b32 v218, 3, v1
v_lshl_add_u32 v28, v218, 7, v28
s_cmp_lt_u32 s75, 28
s_cbranch_scc1 {lb}
s_lshr_b32 s89, s{sK}, 1
s_add_u32 s89, s89, 14
s_lshl_b32 s73, s{sWAVE}, 5
s_add_u32 s89, s89, s73
s_lshl_b32 s89, s89, 1
s_and_b32 s73, s{sK}, 1
s_add_u32 s89, s89, s73
s_mul_i32 s73, s89, {8*3584}
s_add_u32 s73, s73, s90
s_cmp_lt_u32 s{sK}, {24 if g.opt("gpf", 1) else 0}
s_cselect_b32 s73, s73, s{SW1+2}
s_mov_b32 exec_hi, 0
{lb}:
""")
    g.vmem(f"buffer_load_dword v218, v28, {sr(SW1)}, s73 offen", "m")
    g(f"s_add_u32 s73, s73, {7*16*3584}\ns_cmp_lt_u32 s75, 28\ns_cselect_b32 s89, s73, s{SW1+2}")
    g.vmem(f"buffer_load_dword v218, v28, {sr(SW1)}, s89 offen", "m")
    g("s_mov_b64 exec, -1")

def late_loads(g):
    sd = sr(SC)
    g.srd(SC, 12, SZ_SD)
    g.vmem(f"buffer_load_dwordx2 v[206:207], v202, {sd}, s91 offen", "m")
    g.vmem(f"buffer_load_dwordx4 v[208:211], v200, {sd}, s91 offen", "m")
    g.vmem(f"buffer_load_dwordx2 v[212:213], v201, {sd}, s91 offen", "m")
    g.vmem(f"buffer_load_dwordx4 v[214:217], v200, {sd}, s91 offen offset:1024", "m")
    g.srd(SC, 20, F * 2)
    g("v_lshlrev_b32 v203, 4, v5")
    for p in range(2):
        g.vmem(f"buffer_load_dwordx4 {vr(32+4*p,4)}, v203, {sd}, s74 offen offset:{32*p}", "m")
    g("v_readfirstlane_b32 s89, v205\ns_nop 1\nv_mov_b32 v205, s89")

def setup2(g):
    g(f"""
s_mul_i32 s{sST}, s{sK}, 9363
s_lshr_b32 s{sST}, s{sST}, 16
s_mul_i32 s{sDT2}, s{sST}, 7
s_sub_u32 s{sDT2}, s{sK}, s{sDT2}
s_lshl_b32 s89, s{sX}, 2
s_add_u32 s{sST}, s{sST}, s89
v_lshlrev_b32 v8, 12, v2
v_lshl_add_u32 v8, v3, 4, v8
v_add_u32 v9, {8*4096-1024}, v8
v_mul_u32_u24 v12, 7168, v5
v_lshl_add_u32 v12, v6, 4, v12
s_and_b32 s62, s{sWAVE}, 1
s_lshl_b32 s62, s62, 9
v_add_u32 v16, s62, v12
s_xor_b32 s62, s62, 512
v_add_u32 v17, s62, v12
v_bfe_u32 v7, v1, 2, 2
v_lshl_add_u32 v4, v5, 3, v7
v_lshlrev_b32 v21, 7, v4
v_bfe_u32 v4, v1, 4, 1
v_and_b32 v7, 2, v7
v_xor_b32 v4, v4, v7
v_lshl_add_u32 v21, v4, 5, v21
v_and_b32 v7, 3, v1
v_lshl_add_u32 v21, v7, 3, v21
s_lshr_b32 s62, s{sWAVE}, 1
s_lshl_b32 s62, s62, 6
v_xor_b32 v21, s62, v21
v_add_u32 v13, s{sRING}, v21
v_xor_b32 v14, 64, v13
v_lshlrev_b32 v4, 4, v1
s_lshl_b32 s62, s{sWAVE}, 14
v_add_u32 v15, s62, v4
s_xor_b32 s63, s62, {1*16384}
s_add_u32 s63, s63, {1*4096}
v_add_u32 v18, s63, v4
s_xor_b32 s63, s62, {2*16384}
s_add_u32 s63, s63, {2*4096}
v_add_u32 v19, s63, v4
s_xor_b32 s63, s62, {3*16384}
s_add_u32 s63, s63, {3*4096}
v_add_u32 v20, s63, v4
s_mul_i32 s80, s{sWAVE}, {448*4096}
s_lshl_b32 s62, s{sST}, 7
s_add_u32 s80, s80, s62
s_add_u32 s81, s80, {28*16*4096}
s_mul_i32 s95, s{sDT2}, 0
s_lshl_b32 s67, s95, 16
s_add_u32 s67, s67, s80
s_lshl_b32 s89, s{sST}, 6
s_lshr_b32 s90, s{sWAVE}, 1
s_lshl_b32 s90, s90, 5
s_add_u32 s89, s89, s90
v_add_u32 v49, s89, v6
v_mul_u32_u24 v195, 896, v49
v_lshl_add_u32 v195, v5, 4, v195
s_lshl_b32 s{sOUT}, s{sDT2}, 7
s_and_b32 s90, s{sWAVE}, 1
s_lshl_b32 s90, s90, 6
s_add_u32 s{sOUT}, s{sOUT}, s90
v_lshlrev_b32 v22, 1, v49
v_lshlrev_b32 v49, 3, v49
v_add_u32 v49, {hx(WS_ST)}, v49
s_lshl_b32 s62, s{sWAVE}, 13
s_add_u32 s62, s62, {hx(WS_FA)}
v_lshlrev_b32 v23, 7, v1
v_add_u32 v23, s62, v23
s_lshr_b32 s62, s2, 5
s_lshl_b32 s62, s62, 7
s_add_u32 s62, s62, {hx(WS_FA)}
v_mul_u32_u24 v24, {7*128}, v6
v_add_u32 v24, s62, v24
""")
    g.srd(SW2, 22, S * F * 2)

def x_loads(g, j):
    if j == 0:
        g.srd(SA, 4, SZ_SD)
        for p in range(2):
            g.vmem(f"buffer_load_dwordx4 {vr(40+4*p,4)}, v195, {sr(SA)}, s{sOUT} offen offset:{32*p}", "x")
    else:
        g.srd(SB, 24, S * 2)
        g.vmem(f"buffer_load_ushort v48, v22, {sr(SB)}, 0 offen", "x")

def conv_prep_all(g):
    g(f"""
s_lshr_b32 s62, s{sWAVE}, 1
s_mul_i32 s{sCV}, s62, {CH}
s_add_u32 s{sCV}, s{sCV}, {L_CV}
v_add_u32 v219, s{sCV}, v200
""")
    for q in range(2):
        b = 206 + 6 * q; o = 64 + 1024 * q
        g.lds(f"ds_write_b128 v219, {vr(b+2,4)} offset:{o}", "cw")
        for k in range(4): g(f"v_alignbit_b32 v{220+k}, v{b+2+k}, v{b+1+k}, 16")
        g.lds(f"ds_write_b128 v219, v[220:223] offset:{HC+o}", "cw")
        for k in range(4): g(f"v_mov_b32 v{224+k}, v{b+1+k}")
        g.lds(f"ds_write_b128 v219, v[224:227] offset:{2*HC+o}", "cw")
        for k in range(4): g(f"v_alignbit_b32 v{228+k}, v{b+1+k}, v{b+k}, 16")
        g.lds(f"ds_write_b128 v219, v[228:231] offset:{3*HC+o}", "cw")
    g(f"""
v_mov_b64 v[232:233], 0
v_mov_b64 v[234:235], 0
v_lshrrev_b32 v236, 2, v1
v_min_u32 v236, 4, v236
v_mul_u32_u24 v236, {HC}, v236
v_lshlrev_b32 v237, 4, v1
v_subrev_u32 v238, 256, v237
v_and_b32 v237, 48, v237
v_cmp_gt_u32 vcc, 16, v1
v_and_b32 v239, 15, v1
v_lshrrev_b32 v240, 4, v1
v_cndmask_b32 v237, v238, v237, vcc
v_add3_u32 v236, v236, v237, s{sCV}
s_mov_b32 exec_hi, 0xffff
""")
    g.lds("ds_write_b128 v236, v[232:235]", "cw")
    g(f"""
s_mov_b32 exec_hi, -1
s_and_b32 s62, s{sWAVE}, 1
s_lshl_b32 s63, s62, 8
v_sub_u32 v241, 3, v239
v_and_b32 v241, 3, v241
v_add3_u32 v192, v239, v241, 9
v_lshlrev_b32 v242, 3, v240
v_sub_u32 v192, v192, v242
v_mul_u32_u24 v241, {HC}, v241
v_lshl_add_u32 v192, v192, 1, v241
s_add_u32 s96, s{sCV}, s63
v_add3_u32 v192, v192, s96, 64
""")
    g(f"""
v_lshlrev_b32 v193, 5, v239
v_lshl_add_u32 v193, v240, 4, v193
s_sub_u32 s96, s{sCV}, s63
s_add_u32 s96, s96, {4*HC+512-32}
v_add_u32 v193, s96, v193
v_lshlrev_b32 v194, 5, v239
v_and_b32 v242, 1, v240
v_lshl_add_u32 v194, v242, 9, v194
v_lshrrev_b32 v242, 1, v240
v_lshl_add_u32 v194, v242, 4, v194
s_lshl_b32 s63, s62, 11
s_add_u32 s{sZ}, s{sZ}, s63
s_add_u32 s{sZ}, s{sZ}, {hx(WS_ZT)}
v_lshrrev_b32 v242, 3, v239
s_lshl_b32 s62, s62, 3
v_add3_u32 v242, v242, s62, 2
v_cmp_eq_u32 vcc, v242, v240
v_and_b32 v243, 1, v239
v_lshlrev_b32 v244, 16, v205
v_cndmask_b32 v205, 0, v205, vcc
v_cndmask_b32 v244, 0, v244, vcc
v_cmp_eq_u32 vcc, 0, v243
v_bfe_u32 v245, v239, 1, 2
s_nop 0
v_cndmask_b32 v205, v205, v244, vcc
""")
    for k in range(4):
        g(f"v_cmp_eq_u32 vcc, {3-k}, v245\ns_nop 1\nv_cndmask_b32 v{196+k}, 0, v205, vcc")

def conv_prep(g, fine=False):
    t = Gen(g.cfg); conv_prep_all(t)
    piece = []
    hold = False
    for ln in t.l:
        g.l.append(ln)
        if ln.strip().startswith("ds_write"): g.lg.append("cw")
        if "exec_hi, 0xffff" in ln or "v_cmp" in ln: hold = True
        elif "exec_hi, -1" in ln or "v_cndmask" in ln: hold = False
        piece.append(ln)
        if fine and len(piece) >= 3 and not hold:
            piece = []; yield

def kv_dma(g):
    g(f"""
s_and_b32 s62, s{sWAVE}, 1
s_lshl_b32 s62, s62, 11
s_add_u32 s62, s62, s{sCV}
s_add_u32 m0, s62, {4*HC+512}
s_sub_u32 s63, s{sZ}, {hx(WS_ZT - WS_KVT)}
v_lshlrev_b32 v4, 4, v1
""")
    g.vmem(f"buffer_load_dwordx4 v4, {WS}, s63 offen sc1 lds", "kv")
    g.vmem(f"buffer_load_dwordx4 v4, {WS}, s63 offen offset:1024 sc1 lds", "kv")

def frag_prefetch(g, base, nq, i0, n, step, rot):
    g(f"""
v_lshrrev_b32 v64, 4, v1
v_mul_u32_u24 v64, {nq}, v64
v_bfe_u32 v65, v1, 3, 1
v_add_u32 v64, v64, v65
v_mul_u32_u24 v64, 7168, v64
v_and_b32 v65, 7, v1
v_lshl_add_u32 v64, v65, 7, v64
s_lshl_b32 s96, s62, 10
s_add_u32 s96, s96, {hx(base)}
s_add_u32 s63, s63, {i0}
""")
    if rot: g(f"s_mul_i32 s97, s62, {rot}\ns_add_u32 s63, s63, s97")
    for i in range(n):
        if rot: g(f"s_sub_u32 s97, s63, {nq//2}\ns_cmp_ge_u32 s63, {nq//2}\ns_cselect_b32 s97, s97, s63\ns_mul_i32 s97, s97, 14336")
        else: g(f"s_min_u32 s97, s63, {nq//2 - 1}\ns_mul_i32 s97, s97, 14336")
        g(f"s_add_u32 s97, s97, s96\nbuffer_load_dword v{66+i}, v64, {WS}, s97 offen sc1\ns_add_u32 s63, s63, {step}")

def build(cfg):
    g = Gen(cfg)
    g(f"""
s_cmp_ge_u32 s2, 256
s_cbranch_scc1 L_END
s_load_dwordx16 s[4:19], s[0:1], 0
s_load_dwordx2 s[28:29], s[0:1], 104
s_load_dwordx8 s[20:27], s[0:1], 64
v_lshrrev_b32 v2, 6, v0
v_and_b32 v1, 63, v0
v_readfirstlane_b32 s{sWAVE}, v2
""")
    if g.prof: g("s_memrealtime s[98:99]")
    if g.opt("cpf", 1):
        g(f"""
s_getpc_b64 s[30:31]
s_lshr_b32 s62, s2, 3
s_lshl_b32 s62, s62, 10
s_lshl_b32 s63, s{sWAVE}, 8
s_add_u32 s62, s62, s63
v_lshlrev_b32 v3, 7, v1
v_add_u32 v3, s62, v3
v_min_u32 v3, CODE_BYTES, v3
s_mov_b64 exec, 3
global_load_dword v253, v3, s[30:31]
s_mov_b64 exec, -1
""")
    g(f"""
v_lshrrev_b32 v5, 5, v1
v_and_b32 v6, 31, v1
v_mov_b32 v69, {hx(OOB)}
s_cmp_ge_u32 s{sWAVE}, 2
s_cbranch_scc1 L_LN
""")
    g(f"""
s_mul_i32 s93, s2, 9363
s_lshr_b32 s93, s93, 16
s_mul_i32 s94, s93, 7
s_sub_u32 s94, s2, s94
v_lshrrev_b32 v62, 4, v1
v_and_b32 v63, 15, v1
s_lshl_b32 s64, s93, 1
s_add_u32 s64, s64, s{sWAVE}
s_lshl_b32 s64, s64, 2
v_add_u32 v64, s64, v62
s_lshl_b32 s65, s94, 4
v_add_u32 v65, s65, v63
v_mul_u32_u24 v66, 7168, v64
v_lshl_add_u32 v66, v65, 3, v66
v_add_u32 v67, 3584, v66
v_subrev_u32 v68, 2688, v66
v_cmp_eq_u32 vcc, 0, v64
v_lshlrev_b32 v70, 5, v65
s_cmp_ge_u32 s2, 224
v_cndmask_b32 v68, v68, v69, vcc
s_waitcnt lgkmcnt(0)
""")
    g("s_cbranch_scc1 L_KVSKIP")
    g.srd(SA, 6, SZ_SD); g.srd(SB, 8, SZ_SD); g.srd(SC, 10, D * 8)
    KR, VR_ = 80, 102
    for j in range(3):
        g.vmem(f"buffer_load_dwordx2 {vr(KR+2*j,2)}, v68, {sr(SA)}, 0 offen offset:{896*j}", "k")
    for j in range(8):
        g.vmem(f"buffer_load_dwordx2 {vr(KR+6+2*j,2)}, v{66 + j//4}, {sr(SA)}, 0 offen offset:{896*(j%4)}", "k")
    for j in range(8):
        g.vmem(f"buffer_load_dwordx2 {vr(VR_+2*j,2)}, v{66 + j//4}, {sr(SB)}, 0 offen offset:{896*(j%4)}", "k")
    g.vmem(f"buffer_load_dwordx4 v[72:75], v70, {sr(SC)}, 0 offen", "k")
    g.vmem(f"buffer_load_dwordx4 v[76:79], v70, {sr(SC)}, 0 offen offset:16", "k")
    g("L_KVSKIP:")
    def common_head():
        if g.prof: g("v_mov_b32 v254, 0\nv_writelane_b32 v254, s98, 0")
        g(f"s_mov_b32 s{sMASK}, 0xffff0000\ns_and_b32 s{sX}, s2, 7\ns_lshr_b32 s{sK}, s2, 3\nv_mov_b32 v7, {hx(WS_EP)}")
        g.srd(SWS, 28, WS_SIZE)
        g.stamp(17)
        g("s_barrier")
        g.vmem(f"buffer_load_dword v{vTAG}, v7, {WS}, 0 offen sc1", "m")
        setup(g)
        g.stamp(18)
        setup2(g)
        g.stamp(19)
    common_head()
    g("s_cmp_ge_u32 s2, 224\ns_cbranch_scc1 L_A1")
    g(f"""
s_lshl_b32 s62, s{sWAVE}, 2
v_add_u32 v62, s62, v62
v_and_b32 v71, 7, v63
v_xor_b32 v71, v62, v71
v_lshlrev_b32 v71, 4, v71
v_lshl_add_u32 v71, v63, 9, v71
""")
    def data_wait(tag):
        g.wvm(tag)
        g.stamp(21)
    data_wait("k")
    W = 128
    for p in range(2):
        a0, a1, b0, b1 = 72 + 4*p, 73 + 4*p, 74 + 4*p, 75 + 4*p
        o = W + 8 * p
        g(f"v_lshlrev_b32 v{o}, 16, v{a0}\nv_lshlrev_b32 v{o+1}, 16, v{b0}\nv_and_b32 v{o+2}, s{sMASK}, v{a0}\nv_and_b32 v{o+3}, s{sMASK}, v{b0}")
        g(f"v_lshlrev_b32 v{o+4}, 16, v{a1}\nv_lshlrev_b32 v{o+5}, 16, v{b1}\nv_and_b32 v{o+6}, s{sMASK}, v{a1}\nv_and_b32 v{o+7}, s{sMASK}, v{b1}")
    KU, KO = 144, 168
    for p in range(2):
        for r in range(11):
            g(f"v_lshlrev_b32 v{KU+2*r}, 16, v{KR+2*r+p}\nv_and_b32 v{KU+2*r+1}, s{sMASK}, v{KR+2*r+p}")
        for t in range(4):
            for j in range(8):
                o = KO + 2 * j; r = j + 3 - t
                if t == 0: g(f"v_pk_mul_f32 {vr(o,2)}, {vr(KU+2*r,2)}, {vr(W+8*p,2)}")
                else: g(f"v_pk_fma_f32 {vr(o,2)}, {vr(KU+2*r,2)}, {vr(W+8*p+2*t,2)}, {vr(o,2)}")
        for j in range(8):
            g(f"v_lshlrev_b32 v{KU+2*j}, 16, v{VR_+2*j+p}\nv_and_b32 v{KU+2*j+1}, s{sMASK}, v{VR_+2*j+p}")
        for j in range(8):
            g(f"v_pk_mul_f32 {vr(KO+2*j,2)}, {vr(KO+2*j,2)}, {vr(KU+2*j,2)}")
        for c in range(2):
            u = 220 + 8 * p + 4 * c
            for m in range(4):
                g(f"v_cvt_pk_bf16_f32 v{u+m}, v{KO+2*(7-2*m)+c}, v{KO+2*(6-2*m)+c}")
            g(f"ds_write_b128 v71, {vr(u,4)} offset:{L_KVX + (2*p+c)*128}")
    g("s_branch L_A1")
    g.vm = []; g.lg = []
    g(f"""
L_LN:
s_sub_u32 s62, s{sWAVE}, 2
s_lshl_b32 s62, s62, 2
v_add_u32 v64, s62, v5
s_lshl_b32 s63, s2, 3
v_add_u32 v65, s63, v64
v_mul_u32_u24 v66, 896, v65
v_lshl_add_u32 v66, v6, 4, v66
v_cmp_gt_u32 s[76:77], 28, v6
s_mul_i32 s93, s2, 9363
s_lshr_b32 s93, s93, 16
v_cndmask_b32 v66, v69, v66, s[76:77]
s_waitcnt lgkmcnt(0)
""")
    g.srd(SA, 4, SZ_SD)
    for p in range(2):
        g.vmem(f"buffer_load_dwordx4 {vr(72+8*p,4)}, v66, {sr(SA)}, 0 offen offset:{1792*p}", "xx")
        g.vmem(f"buffer_load_dwordx4 {vr(76+8*p,4)}, v66, {sr(SA)}, 0 offen offset:{1792*p+448}", "xx")
    common_head()
    g(f"""
s_mul_i32 s94, s93, 7
s_sub_u32 s94, s2, s94
v_cndmask_b32 v68, 0, 1.0, s[76:77]
v_mul_u32_u24 v69, {LP}, v64
v_lshl_add_u32 v69, v6, 4, v69
v_lshlrev_b32 v70, 3, v64
v_cmp_eq_u32 s[78:79], 0, v6
""")
    data_wait("xx")
    U = [96, 128]; T = [112, 144]
    for p in range(2):
        for i in range(8):
            g(f"v_lshlrev_b32 v{U[p]+2*i}, 16, v{72+8*p+i}\nv_and_b32 v{U[p]+2*i+1}, s{sMASK}, v{72+8*p+i}")
        u, t = U[p], T[p]
        g(f"v_pk_add_f32 {vr(t,2)}, {vr(u,2)}, {vr(u+2,2)}\nv_pk_add_f32 {vr(t+2,2)}, {vr(u+4,2)}, {vr(u+6,2)}")
        g(f"v_pk_add_f32 {vr(t+4,2)}, {vr(u+8,2)}, {vr(u+10,2)}\nv_pk_add_f32 {vr(t+6,2)}, {vr(u+12,2)}, {vr(u+14,2)}")
        g(f"v_pk_add_f32 {vr(t,2)}, {vr(t,2)}, {vr(t+2,2)}\nv_pk_add_f32 {vr(t+4,2)}, {vr(t+4,2)}, {vr(t+6,2)}")
        g(f"v_pk_add_f32 {vr(t,2)}, {vr(t,2)}, {vr(t+4,2)}\nv_add_f32 v{t}, v{t}, v{t+1}")
    allred2(g, T[0], T[1], T[0]+1, T[1]+1)
    for p in range(2):
        u, t = U[p], T[p]
        g(f"v_mul_f32 v{t}, {hx(f2u(1.0/D))}, v{t}")
        for i in range(8):
            g(f"v_pk_add_f32 {vr(u+2*i,2)}, {vr(u+2*i,2)}, {vr(t,2)} op_sel_hi:[1,0] neg_lo:[0,1] neg_hi:[0,1]")
        g(f"v_pk_mul_f32 {vr(t+2,2)}, {vr(u,2)}, {vr(u,2)}\nv_pk_mul_f32 {vr(t+4,2)}, {vr(u+2,2)}, {vr(u+2,2)}")
        for i in range(2, 8):
            r = t + 2 + 2 * (i % 2)
            g(f"v_pk_fma_f32 {vr(r,2)}, {vr(u+2*i,2)}, {vr(u+2*i,2)}, {vr(r,2)}")
        g(f"v_pk_add_f32 {vr(t+2,2)}, {vr(t+2,2)}, {vr(t+4,2)}\nv_add_f32 v{t+2}, v{t+2}, v{t+3}\nv_mul_f32 v{t+2}, v{t+2}, v68")
    allred2(g, T[0]+2, T[1]+2, T[0]+3, T[1]+3)
    eps = hx(f2u(1e-5))
    for ins in ("v_mul_f32 v{t2}, {c}, v{t2}", "v_add_f32 v{t3}, {eps}, v{t2}", "v_rsq_f32 v{t1}, v{t3}", "v_mul_f32 v{t4}, v{t1}, v{t1}",
                "v_fmaak_f32 v{t4}, v{t4}, v{t2}, {eps}", "v_rsq_f32 v{t4}, v{t4}", "v_mul_f32 v{t4}, v{t4}, v{t1}"):
        for p in range(2):
            t = T[p]; g(ins.format(t1=t+1, t2=t+2, t3=t+3, t4=t+4, c=hx(f2u(1.0/D)), eps=eps))
    for p in range(2):
        u, t = U[p], T[p]
        for i in range(8):
            g(f"v_pk_mul_f32 {vr(u+2*i,2)}, {vr(u+2*i,2)}, {vr(t+4,2)} op_sel_hi:[1,0]")
        for i in range(8):
            g(f"v_cvt_pk_bf16_f32 v{160+8*p+i}, v{u+2*i}, v{u+2*i+1}")
    g("s_mov_b64 exec, s[76:77]")
    for p in range(2):
        g(f"ds_write_b128 v69, {vr(160+8*p,4)} offset:{L_LN + 2*p*LP}\nds_write_b128 v69, {vr(164+8*p,4)} offset:{L_LN + 2*p*LP+448}")
    g("s_mov_b64 exec, s[78:79]")
    for p in range(2):
        g(f"ds_write_b64 v70, {vr(T[p],2)} offset:{L_ST + 16*p}")
    g("s_mov_b64 exec, -1")
    g.vm = []; g.lg = []
    g(f"""
L_A1:
v_bfe_u32 v64, v1, 2, 2
v_mul_u32_u24 v64, {LP}, v64
v_lshrrev_b32 v65, 4, v0
v_lshl_add_u32 v64, v65, 5, v64
v_and_b32 v65, 3, v1
v_lshl_add_u32 v64, v65, 3, v64
v_lshlrev_b32 v66, 4, v0
s_mul_i32 s62, s2, 7168
s_add_u32 s63, s62, 4096
s_lshl_b32 s96, s2, 6
s_add_u32 s96, s96, {hx(WS_ST)}
v_lshrrev_b32 v67, 5, v0
v_and_b32 v68, 7, v1
v_xor_b32 v67, v67, v68
v_lshlrev_b32 v67, 4, v67
v_lshrrev_b32 v68, 3, v0
v_lshl_add_u32 v67, v68, 12, v67
s_lshl_b32 s78, s94, 18
s_lshl_b32 s79, s93, 7
s_add_u32 s78, s78, s79
s_add_u32 s78, s78, {hx(WS_KVT)}
s_add_u32 s79, s78, {32*4096}
s_waitcnt lgkmcnt(0)
s_barrier
""")
    g.stamp(1)
    g(f"""
ds_read_b64_tr_b16 v[72:73], v64 offset:{L_LN}
ds_read_b64_tr_b16 v[74:75], v64 offset:{L_LN + 4*LP}
ds_read_b128 v[80:83], v66 offset:{L_KVX}
ds_read_b128 v[84:87], v66 offset:{L_KVX + 4096}
s_cmp_eq_u32 s{sWAVE}, 3
s_cbranch_scc1 L_A2
ds_read_b64_tr_b16 v[76:77], v64 offset:{L_LN + 512}
ds_read_b64_tr_b16 v[78:79], v64 offset:{L_LN + 4*LP + 512}
s_waitcnt lgkmcnt(0)
buffer_store_dwordx4 v[76:79], v66, {WS}, s63 offen sc1
s_branch L_A3
L_A2:
ds_read_b128 v[76:79], v66 offset:{L_ST - 3072}
v_lshlrev_b32 v68, 4, v1
s_waitcnt lgkmcnt(0)
s_mov_b64 exec, 15
buffer_store_dwordx4 v[76:79], v68, {WS}, s96 offen sc1
s_mov_b64 exec, -1
L_A3:
buffer_store_dwordx4 v[72:75], v66, {WS}, s62 offen sc1
s_cmp_ge_u32 s2, 224
s_cbranch_scc1 L_A4
buffer_store_dwordx4 v[80:83], v67, {WS}, s78 offen sc1
buffer_store_dwordx4 v[84:87], v67, {WS}, s79 offen sc1
L_A4:
s_lshl_b32 s96, s2, 7
s_add_u32 s96, s96, {hx(WS_FA)}
""")
    g.vm = ["ast"]
    def flagA():
        g.wvm("ast")
        lb = g.lab("FA")
        g(f"v_add_u32 v{vTAG}, 1, v{vTAG}\ns_barrier\ns_cmp_lg_u32 s{sWAVE}, 0\ns_cbranch_scc1 {lb}")
        flag_store(g, 96)
        g(f"{lb}:")
        g.stamp(2)
    g(f"s_cmp_lt_u32 s{sK}, s{sCNT}\ns_cbranch_scc0 L_NOG1")
    a_vm = list(g.vm)
    g(f"s_mul_i32 s66, s{sWAVE}, {512*3584}\ns_lshl_b32 s62, s{sFT}, 7\ns_add_u32 s66, s66, s62")
    W1 = WPhase(g, 32, 10, SW1, 66, 16 * 3584, "w1")
    for i in range(g.opt("w1pre", 3)): W1.issue()
    flagA()
    W1.fill()
    ll = g.opt("late", 12); pa = g.opt("pa", 21)
    W2 = WPhase(g, 28, 8, SW2, 67, 16 * 4096, "w2")
    NT1 = g.opt("nt1", 4)
    g(f"s_mul_i32 s68, s{sWAVE}, {64*7168}\ns_lshl_b32 s62, s{sDT1}, 10\ns_add_u32 s68, s68, s62")
    for i in range(27):
        W1.step()
        if i == ll: late_loads(g)
        if i == pa: poll_issue(g, [23, 24], "pa")
    assert W1.issued == 32
    g.stamp(3)
    poll_check(g, [23, 24], "pa")
    g.stamp(4)
    def head1():
        while W1.read < 32: W1.step()
    cp = conv_prep(g, fine=True)
    def tail1(j):
        if 0 <= j < NT1: yield from W2.issue2()
        elif j < -1:
            next(cp, None); yield
            next(cp, None); yield
        elif j == -1:
            for _ in cp: pass
            kv_dma(g)
    s_phase(g, 32, True, 68, tail1, head=head1)
    g.stamp(5)
    g("s_nop 7")
    def epi1(W, real):
        if real: reduce4(g, tick=W.step)
        else: W.step()
        g.stamp(6)
        c = math.sqrt(2 / math.pi); l2e = math.log2(math.e)
        k0 = -2 * c * l2e; k1 = k0 * 0.044715
        if real:
            g(f"""
s_mov_b32 s62, {hx(f2u(k1))}
v_mov_b32 v52, {hx(f2u(k0))}
s_lshr_b32 s63, s{sWAVE}, 1
s_lshl_b32 s64, s{sFT}, 3
s_lshl_b32 s63, s63, 2
s_add_u32 s64, s64, s63
s_mul_i32 s64, s64, 7168
s_lshl_b32 s63, s{sDT1}, 10
s_add_u32 s64, s64, s63
s_add_u32 s64, s64, {hx(WS_UF)}
s_add_u32 s65, s64, {2*7168}
v_permlane32_swap_b32 v32, v34
v_permlane32_swap_b32 v33, v35
v_permlane32_swap_b32 v36, v38
v_permlane32_swap_b32 v37, v39
""")
        for rg in range(4):
            b = 32 + 2 * rg; u = ACC + 4 * rg
            if real:
                g(f"v_lshlrev_b32 v56, 16, v{b}\nv_and_b32 v57, s{sMASK}, v{b}\nv_lshlrev_b32 v58, 16, v{b+1}\nv_and_b32 v59, s{sMASK}, v{b+1}")
                g(f"v_pk_add_f32 {vr(u,2)}, {vr(u,2)}, v[56:57]\nv_pk_add_f32 {vr(u+2,2)}, {vr(u+2,2)}, v[58:59]")
                g(f"v_pk_mul_f32 v[56:57], {vr(u,2)}, {vr(u,2)}\nv_pk_mul_f32 v[58:59], {vr(u+2,2)}, {vr(u+2,2)}")
                for r in range(4): g(f"v_fma_f32 v{56+r}, v{56+r}, s62, v52")
                g(f"v_pk_mul_f32 v[56:57], v[56:57], {vr(u,2)}\nv_pk_mul_f32 v[58:59], v[58:59], {vr(u+2,2)}")
                for r in range(4): g(f"v_exp_f32 v{56+r}, v{56+r}")
                for r in range(4): g(f"v_add_f32 v{56+r}, 1.0, v{56+r}")
                for r in range(4): g(f"v_rcp_f32 v{56+r}, v{56+r}")
                g("s_nop 0")
                g(f"v_pk_mul_f32 v[56:57], v[56:57], {vr(u,2)}\nv_pk_mul_f32 v[58:59], v[58:59], {vr(u+2,2)}")
                g(f"v_cvt_pk_bf16_f32 v{b}, v56, v57\nv_cvt_pk_bf16_f32 v{b+1}, v58, v59")
            if rg & 1:
                x = b - 2
                if real:
                    g(f"s_nop 1\nv_permlane32_swap_b32 v{x}, v{x+2}\nv_permlane32_swap_b32 v{x+1}, v{x+3}")
                    g.vmem(f"buffer_store_dwordx4 {vr(x,4)}, v16, {WS}, s{64 + rg//2} offen sc1", "ust")
                else:
                    g.vmem(f"buffer_load_dword v253, v69, {WS}, 0 offen", "ust")
            if rg < 3 and g.opt("w2epi", 1): W.step()
        g.stamp(7)
    epi1(W2, True)
    g(f"s_lshl_b32 s96, s{sT1}, 2\ns_add_u32 s96, s96, s{sWAVE}\ns_lshl_b32 s96, s96, 7\ns_add_u32 s96, s96, {hx(WS_FU)}\ns_branch L_MID")
    mid = (list(g.vm), list(g.lg), W2.issued, W2.read)
    g.vm = list(a_vm); g.lg = []
    g("L_NOG1:")
    flagA()
    g(f"""
s_and_b32 s72, s75, 3
s_mul_i32 s72, s72, 28
s_lshr_b32 s63, s75, 2
s_add_u32 s72, s72, s63
s_lshl_b32 s72, s72, 16
s_lshl_b32 s63, s{sX}, 9
s_add_u32 s72, s72, s63
v_lshrrev_b32 v29, 2, v1
v_lshlrev_b32 v29, 12, v29
v_and_b32 v65, 3, v1
v_lshl_add_u32 v29, v65, 7, v29
""")
    g(f"v_mov_b32 v69, {hx(OOB)}\ns_cmp_lt_u32 s75, 28\ns_cbranch_scc0 L_NOHP")
    if g.opt("gpf", 1):
        g(f"s_add_u32 s73, s73, {19*16*3584}\ns_cmp_lt_u32 s75, 24\ns_cselect_b32 s73, s73, s{SW1+2}\nbuffer_load_dword v218, v28, {sr(SW1)}, s73 offen")
    else:
        for j in range(2, 5):
            g(f"s_add_u32 s73, s73, {7*16*3584}")
            if j == 4: g(f"s_cmp_lt_u32 s75, 16\ns_cselect_b32 s73, s73, s{SW1+2}")
            g(f"buffer_load_dword v218, v28, {sr(SW1)}, s73 offen")
    g.srd(SC, 12, SZ_SD)
    g(f"s_lshl_b32 s62, s75, 3\ns_add_u32 s62, s62, s{sX}\ns_lshl_b32 s62, s62, 13\nv_lshlrev_b32 v64, 7, v1\nbuffer_load_dword v218, v64, {sr(SC)}, s62 offen")
    def pfw2(n):
        for i in range(n): g(f"buffer_load_dword v218, v29, {sr(SW2)}, s72 offen\ns_add_u32 s72, s72, {4*16*4096}")
    if g.opt("w2e", 0):
        g(f"s_cmp_lt_u32 s75, 16\ns_cbranch_scc0 L_W2E")
        pfw2(g.opt("w2e", 0))
        g("L_W2E:")
    g(f"""
s_mul_i32 s65, s75, 9363
s_lshr_b32 s65, s65, 16
s_mul_i32 s64, s65, 7
s_sub_u32 s64, s75, s64
v_lshrrev_b32 v25, 4, v1
v_lshlrev_b32 v25, 6, v25
v_bfe_u32 v26, v1, 1, 3
v_lshl_add_u32 v25, v26, 3, v25
v_and_b32 v26, 1, v1
v_add_u32 v25, v25, v26
s_lshl_b32 s62, s65, 1
v_add_u32 v25, s62, v25
v_lshlrev_b32 v25, 7, v25
v_add_u32 v25, {hx(WS_FA)}, v25
""")
    g.stamp(3)
    if g.opt("gateA", 0): poll_gated(g, [25], 2)
    else: poll_issue(g, [25], "pa"); poll_check(g, [25], "pa")
    g.stamp(4)
    g("s_mov_b32 s62, s64\ns_mov_b32 s63, s65")
    frag_prefetch(g, WS_HF, 64, 0, g.opt("hn", 8), 4, None)
    g("L_NOHP:")
    g(f"s_cmp_ge_u32 s{sK}, 28\ns_cbranch_scc1 L_HELP")
    late_loads(g)
    g.wvm("m")
    for _ in conv_prep(g): pass
    poll_gated(g, [24], 4)
    kv_dma(g)
    W2d = WPhase(g, 28, 8, SW2, 67, 16 * 4096, "w2")
    for j in range(NT1):
        for _ in W2d.issue2(): pass
    g.wvm("kv")
    g.wall(vm=False)
    g("s_barrier")
    epi1(W2d, False)
    g(f"s_mov_b32 s96, {hx(WS_EP + 128)}")
    assert mid == (g.vm, g.lg, W2d.issued, W2d.read), (mid, g.vm, g.lg)
    g("L_MID:")
    g.stamp(8)
    CA, CB = 96, 128
    def rdA(t):
        g.lds(f"ds_read_b64 {vr(CA+4*t,2)}, v192 offset:{512*t}", f"A{t}")
        g.lds(f"ds_read_b64 {vr(CA+4*t+2,2)}, v192 offset:{512*t+8}", f"A{t}")
    def rdB(u): g.lds(f"ds_read_b128 {vr(CB+4*u,4)}, v193 offset:{512*u}", f"B{u}")
    nm = [0]; per = g.opt("wper", 2); mic = W2.micro()
    def mf(acc, x, y, c=None):
        g(f"v_mfma_f32_16x16x32_bf16 {vr(ACC+4*acc,4)}, {x}, {y}, {c if c is not None else vr(ACC+4*acc,4)}")
        nm[0] += 1
        if nm[0] % per == 0: next(mic, None)
    g(f"""
s_mul_i32 s62, s{sWAVE}, 49
s_add_u32 s62, s62, s{sDT2}
v_lshrrev_b32 v23, 2, v1
v_min_u32 v23, 6, v23
v_mul_u32_u24 v23, 7, v23
v_add_u32 v23, s62, v23
v_and_b32 v24, 3, v1
v_lshl_add_u32 v23, v23, 2, v24
v_lshlrev_b32 v23, 7, v23
v_add_u32 v23, {hx(WS_FU)}, v23
""")
    if g.opt("nomix", 0):
        for _ in mic: pass
        g.stamp(20)
    for u in range(8): rdB(u)
    for t in range(7, 4, -1): rdA(t)
    for u in range(8):
        g.wlg(f"B{u}")
        mf(u, "v[196:199]", vr(CB + 4 * u, 4), "0")
        if u < 5: rdA(4 - u)
    for it in range(4):
        last = it == 3
        if not last: g("v_add_u32 v192, 64, v192\nv_subrev_u32 v193, 64, v193")
        for t in range(7, -1, -1):
            g.wlg(f"A{t}")
            for u in range(0, 8 - t):
                g.wlg(f"B{u}")
                mf(t + u, vr(CA + 4 * t, 4), vr(CB + 4 * u, 4))
                if t == 0 and not last: rdB(u)
            if not last: rdA(t)
            if it == g.opt("uf_it", 0) and t == g.opt("uf_t", 1):
                g.wvm("ust"); flag_store(g, 96)
            if it == 1 and t in (3, 2): x_loads(g, 3 - t)
    g.stamp(9)
    poll_issue(g, [23], "pu")
    g(f"""
v_xor_b32 v4, {16384}, v15
s_bitcmp1_b32 s{sWAVE}, 0
s_nop 4
s_cbranch_scc1 L_ZX1
""")
    for r in range(4): g(f"ds_write_b128 v4, {vr(ACC+16+4*r,4)} offset:{r*1024}")
    g("s_branch L_ZX2\nL_ZX1:")
    for r in range(4): g(f"ds_write_b128 v4, {vr(ACC+4*r,4)} offset:{r*1024}")
    g("s_waitcnt lgkmcnt(0)")
    for r in range(0, 16, 2): g(f"v_mov_b64 {vr(ACC+r,2)}, {vr(ACC+16+r,2)}")
    g("L_ZX2:")
    g.wall(vm=False)
    g("s_barrier")
    for r in range(4): g.lds(f"ds_read_b128 {vr(ACC+16+4*r,4)}, v15 offset:{r*1024}", f"zx{r}")
    for _ in mic: pass
    for r in range(4):
        g.wlg(f"zx{r}")
        q = ACC + 4 * r
        g(f"v_pk_add_f32 {vr(q,2)}, {vr(q,2)}, {vr(q+16,2)}\nv_pk_add_f32 {vr(q+2,2)}, {vr(q+2,2)}, {vr(q+18,2)}")
        z = ACC + 32 + 2 * r
        g(f"v_cvt_pk_bf16_f32 v{z}, v{q}, v{q+1}\nv_cvt_pk_bf16_f32 v{z+1}, v{q+2}, v{q+3}")
        if r & 1:
            g(f"s_nop 1\nv_permlane16_swap_b32 v{z-2}, v{z}\nv_permlane16_swap_b32 v{z-1}, v{z+1}")
            g.vmem(f"buffer_store_dwordx4 {vr(z-2,4)}, v194, {WS}, s{sZ} offen offset:{512*(r-1)} sc1", "zst")
    g(f"""
s_lshl_b32 s96, s2, 2
s_add_u32 s96, s96, s{sWAVE}
s_lshl_b32 s96, s96, 7
s_add_u32 s96, s96, {hx(WS_FZ)}
s_mul_i32 s68, s{sWAVE}, {56*7168}
s_lshl_b32 s62, s{sDT2}, 10
s_add_u32 s68, s68, s62
s_add_u32 s80, s68, {hx(WS_UF)}
s_add_u32 s81, s80, {56*7168}
s_mul_i32 s68, s95, 14336
s_add_u32 s68, s68, s80
s_lshl_b32 s62, s{sDT2}, 6
s_lshl_b32 s63, s{sWAVE}, 4
s_add_u32 s62, s62, s63
s_lshl_b32 s64, s62, 12
s_lshl_b32 s63, s{sST}, 7
s_add_u32 s64, s64, s63
s_add_u32 s64, s64, {hx(WS_ZT)}
s_lshl_b32 s62, s62, 1
s_lshr_b32 s63, s{sST}, 4
s_add_u32 s62, s62, s63
s_lshl_b32 s62, s62, 7
s_add_u32 s62, s62, {hx(WS_FZ)}
v_and_b32 v7, 15, v1
v_lshlrev_b32 v7, 8, v7
v_add_u32 v7, s62, v7
""")
    g.stamp(10)
    poll_check(g, [23], "pu")
    g.stamp(11)
    zp = g.opt("zp", 0)
    def tail2(j):
        if j == 7 - 28:
            yield
            flag_store(g, 96)
        if j == 0: g.vmem(f"buffer_load_dwordx2 v[50:51], v49, {WS}, 0 offen sc1", "st")
        if j == zp: poll_issue(g, [7], "pz")
        if j == zp + g.opt("zd", 3):
            poll_check(g, [7], "pz")
            g(f"s_mov_b32 m0, s{sRING}\ns_nop 0")
            g.vmem(f"buffer_load_dwordx4 v8, {WS}, s64 offen sc1 lds", "z")
            yield
            g.vmem(f"buffer_load_dwordx4 v9, {WS}, s64 offen offset:1024 sc1 lds", "z")
    s_phase(g, 28, False, 68, tail2)
    g.stamp(12)
    g("s_nop 7")
    l2e = math.log2(math.e)
    def pre2():
        g.srd(SA, 26, SZ_SD)
        g(f"""
v_lshlrev_b32 v54, 9, v5
v_sub_u32 v53, v21, v54
s_and_b32 s62, s{sWAVE}, 1
s_mul_i32 s62, s62, {2*RW}
s_add_u32 s62, s62, {L_RING}
v_add_u32 v53, s62, v53
v_lshlrev_b32 v48, 16, v48
v_permlane32_swap_b32 v40, v42
v_permlane32_swap_b32 v41, v43
v_permlane32_swap_b32 v44, v46
v_permlane32_swap_b32 v45, v47
s_mov_b32 s62, {hx(f2u(-l2e))}
""")
        g.wall(lg=False)
        g("v_mul_f32 v50, v50, v51")
    def zreads():
        pass
    reduce4(g, pre_barrier=pre2)
    g.stamp(14)
    for rg in range(4):
        g.lds(f"ds_read_b64_tr_b16 {vr(32+2*rg,2)}, v53 offset:{(rg>>1)*RW + (rg&1)*1024}", f"z{rg}")
    for rg in range(4):
        u = ACC + 4 * rg; x = 40 + 2 * rg; z = 32 + 2 * rg
        g(f"v_pk_add_f32 {vr(u,2)}, {vr(u,2)}, v[48:49] op_sel_hi:[1,0]\nv_pk_add_f32 {vr(u+2,2)}, {vr(u+2,2)}, v[48:49] op_sel_hi:[1,0]")
        for r in range(4): g(f"v_mul_f32 v{56+r}, s62, v{u+r}")
        for r in range(4): g(f"v_exp_f32 v{56+r}, v{56+r}")
        g(f"v_lshlrev_b32 v60, 16, v{x}\nv_and_b32 v61, s{sMASK}, v{x}\nv_lshlrev_b32 v62, 16, v{x+1}\nv_and_b32 v63, s{sMASK}, v{x+1}")
        for r in range(4): g(f"v_add_f32 v{56+r}, 1.0, v{56+r}")
        for r in range(4): g(f"v_rcp_f32 v{56+r}, v{56+r}")
        g.wlg(f"z{rg}")
        g(f"v_lshlrev_b32 v84, 16, v{z}\nv_and_b32 v85, s{sMASK}, v{z}\nv_lshlrev_b32 v86, 16, v{z+1}\nv_and_b32 v87, s{sMASK}, v{z+1}")
        g(f"v_pk_mul_f32 {vr(u,2)}, {vr(u,2)}, v[56:57]\nv_pk_mul_f32 {vr(u+2,2)}, {vr(u+2,2)}, v[58:59]")
        for r in range(4): g(f"v_fma_f32 v{56+r}, v{60+r}, v51, -v50")
        g(f"v_pk_mul_f32 {vr(u,2)}, {vr(u,2)}, v[84:85]\nv_pk_mul_f32 {vr(u+2,2)}, {vr(u+2,2)}, v[86:87]")
        g(f"v_pk_fma_f32 {vr(u,2)}, {vr(u,2)}, v[56:57], v[60:61]\nv_pk_fma_f32 {vr(u+2,2)}, {vr(u+2,2)}, v[58:59], v[62:63]")
        g(f"v_cvt_pk_bf16_f32 v{88+2*rg}, v{u}, v{u+1}\nv_cvt_pk_bf16_f32 v{89+2*rg}, v{u+2}, v{u+3}")
        if rg & 1:
            y = 88 + 2 * (rg - 1)
            g(f"s_nop 1\nv_permlane32_swap_b32 v{y}, v{y+2}\nv_permlane32_swap_b32 v{y+1}, v{y+3}")
            g(f"buffer_store_dwordx4 {vr(y,4)}, v195, {sr(SA)}, s{sOUT} offen offset:{16*(rg-1)}")
    g.stamp(15)
    g(f"""
s_or_b32 s62, s2, s{sWAVE}
s_cmp_lg_u32 s62, 0
s_cbranch_scc1 L_FIN
s_mov_b32 s96, {hx(WS_EP)}
""")
    flag_store(g, 96)
    g("s_branch L_FIN")
    g("L_HELP:")
    pfw2(7 - g.opt("w2e", 0))
    u0 = g.opt("u0", 0)
    if u0 < 28:
        g(f"""
s_sub_u32 s64, 31, s{sK}
s_lshl_b32 s64, s64, 2
s_add_u32 s64, s64, s{sWAVE}
s_cmp_ge_u32 s64, 14
s_cbranch_scc1 L_FIN
s_cmp_ge_u32 s64, 7
s_cselect_b32 s65, 1, 0
s_mul_i32 s66, s65, 7
s_sub_u32 s66, s64, s66
v_lshrrev_b32 v23, 2, v1
v_mul_u32_u24 v23, 7, v23
v_add_u32 v23, s66, v23
v_and_b32 v24, 3, v1
v_lshl_add_u32 v23, v23, 2, v24
v_lshlrev_b32 v23, 7, v23
v_add_u32 v23, {hx(WS_FU)}, v23
v_lshrrev_b32 v25, 2, v1
v_min_u32 v25, 11, v25
v_add_u32 v25, 16, v25
v_mul_u32_u24 v25, 7, v25
v_add_u32 v25, s66, v25
v_lshl_add_u32 v25, v25, 2, v24
v_lshlrev_b32 v25, 7, v25
v_add_u32 v25, {hx(WS_FU)}, v25
""")
        poll_gated(g, [23, 25], 8)
        g.stamp(11)
        g("s_mov_b32 s62, s66\ns_mov_b32 s63, s65")
        frag_prefetch(g, WS_UF, 56, u0, (28 - u0) // 2, 2, None)
    g("L_FIN:")
    if g.prof:
        g("s_waitcnt vmcnt(0)"); g.stamp(16)
        g(f"s_lshl_b32 s62, s2, 2\ns_add_u32 s62, s62, s{sWAVE}\ns_lshl_b32 s62, s62, 8\ns_add_u32 s62, s62, {hx(WS_PROF)}\nv_lshlrev_b32 v7, 2, v1")
        g(f"buffer_store_dword v254, v7, {WS}, s62 offen")
    g("L_END:")
    return g.text().replace("CODE_BYTES", f"L_END-{KNAME}-256")

import gen2
HEADER = gen2.HEADER
def emit(cfg):
    if "spin" in cfg:
        cfg["prof"] = 1
        t = emit1(cfg).replace("; @launch grid", f"; @launch kernel={KNAME} grid")
        t = t.replace(".amdgcn_target", "; @launch kernel=spin_kernel grid=(1,1,1) block=(64,1,1) lds=0\n.amdgcn_target")
        return t + gen2.spin_kernel(cfg["spin"]).replace('v_lshlrev_b32 v1, 7, v0', 'v_lshlrev_b32 v1, 8, v0').replace('0x40000', '0x80000').replace('s_mov_b32 s3, ', 's_mov_b32 s3, 2*')
    return emit1(cfg)

def emit1(cfg):
    body = build(cfg)
    return HEADER + f"""; @launch grid=(256,1,1) block=(256,1,1) lds={LDS_TOTAL}
.amdgcn_target "amdgcn-amd-amdhsa--gfx950"
.text
.globl {KNAME}
.p2align 8
.type {KNAME},@function
{KNAME}:
{body}  s_endpgm
.section .rodata,"a"
.p2align 6
.amdhsa_kernel {KNAME}
  .amdhsa_next_free_vgpr 512
  .amdhsa_next_free_sgpr 102
  .amdhsa_accum_offset 256
  .amdhsa_group_segment_fixed_size 0
  .amdhsa_kernarg_size 112
  .amdhsa_user_sgpr_count 2
  .amdhsa_user_sgpr_kernarg_segment_ptr 1
  .amdhsa_system_sgpr_workgroup_id_x 1
.end_amdhsa_kernel
"""

if __name__ == "__main__":
    out = sys.argv[1]
    cfg = {}
    for kv in sys.argv[2:]:
        k, v = kv.split("="); cfg[k] = int(v)
    open(out, "w").write(emit(cfg))
    print("wrote", out)
```
